```python
import torch

def _softmax(x, axis=-1):
    return torch.softmax(x, dim=axis)
def _gelu(x):
    return torch.nn.functional.gelu(x, approximate="tanh")
def _silu(x):
    return torch.nn.functional.silu(x)
def _sigmoid(x):
    return torch.sigmoid(x)
def _layernorm(x, axis=-1, eps=1e-5):
    m = x.mean(dim=axis, keepdim=True)
    v = x.var(dim=axis, keepdim=True, unbiased=False)
    return (x - m) / torch.sqrt(v + eps)
def _scatter_add(tgt, idx, src, axis=0):
    return tgt.clone().index_add_(axis, idx, src)
def _segment_sum(src, seg, n):
    out = torch.zeros((n,) + src.shape[1:], dtype=src.dtype)
    return out.index_add_(0, seg, src)
def _pad(x, pw):
    flat = tuple(v for pair in reversed(pw) for v in pair)
    return torch.nn.functional.pad(x, flat)

kernel_name = 'standalone__glu_gated_geglu__prompt'

def setup_inputs():

    _w = (lambda a: (lambda t: t.to(torch.bfloat16) if t.is_floating_point() else t)(torch.as_tensor(a)))
    B, S, Dm, Df = 1, 2048, 640, 1728
    return {
        "x": _w((lambda *s: torch.randn(*s, dtype=torch.bfloat16) * 0.05)(B, S, Dm)),
        "w_gate": _w((lambda *s: torch.randn(*s, dtype=torch.bfloat16) * 0.05)(Dm, Df) * (Dm ** -0.5)),
        "w_up": _w((lambda *s: torch.randn(*s, dtype=torch.bfloat16) * 0.05)(Dm, Df) * (Dm ** -0.5)),
        "w_down": _w((lambda *s: torch.randn(*s, dtype=torch.bfloat16) * 0.05)(Df, Dm) * (Df ** -0.5)),
    }

def reference(x, w_gate, w_up, w_down):
    g = torch.einsum("bsd,df->bsf", x, w_gate)
    u = torch.einsum("bsd,df->bsf", x, w_up)
    h = _gelu(g) * u
    return torch.einsum("bsf,fd->bsd", h, w_down)
```

```python
import sys, math, struct

M, DM, DF = 2048, 640, 1728
XB, WB, OB = M*DM*2, DM*DF*2, M*DM*2
HB = 128*54*1024
C1 = -2.0*math.sqrt(2.0/math.pi)*math.log2(math.e)
C2 = C1*0.044715
def f2u(x): return struct.unpack('<I', struct.pack('<f', x))[0]

class Asm:
    def __init__(s):
        s.L = []; s.vm = []; s.lg = []; s.nstamp = 0; s.diag = False
    def __call__(s, t): s.L.append('    ' + t)
    def label(s, t): s.L.append(t + ':')
    def raw(s, t): s.L.append(t)
    def vmem(s, t, tag): s(t); s.vm.append(tag)
    def lds(s, t, tag): s(t); s.lg.append(tag)
    def _cnt(s, q, tags):
        idx = -1
        for i, x in enumerate(q):
            if x in tags: idx = i
        return None if idx < 0 else len(q) - 1 - idx
    def wait(s, vm=None, lg=None):
        parts = []
        if vm is not None:
            n = 0 if vm == 'all' else s._cnt(s.vm, vm if isinstance(vm, (list, set)) else [vm])
            if n is not None:
                n = min(n, 63); parts.append('vmcnt(%d)' % n); s.vm = s.vm[len(s.vm)-n:] if n else []
        if lg is not None:
            n = 0 if lg == 'all' else s._cnt(s.lg, lg if isinstance(lg, (list, set)) else [lg])
            if n is not None:
                n = min(n, 15); parts.append('lgkmcnt(%d)' % n); s.lg = s.lg[len(s.lg)-n:] if n else []
        if parts: s('s_waitcnt ' + ' '.join(parts))
    def stamp(s):
        if not s.diag: return
        s('s_memtime s[98:99]'); s('s_waitcnt lgkmcnt(0)'); s.lg = []
        s('v_writelane_b32 v255, s98, %d' % s.nstamp); s.nstamp += 1
    def rstamp(s):
        if not s.diag: return
        s('s_memrealtime s[98:99]'); s('s_waitcnt lgkmcnt(0)'); s.lg = []
        s('v_writelane_b32 v255, s98, %d' % s.nstamp); s.nstamp += 1

def vr(b, n=4, p='v'): return '%s[%d:%d]' % (p, b, b+n-1)

S_X, S_WG, S_WU, S_WD, S_OUT, S_H, S_DBG, S_W = 20, 24, 28, 32, 36, 40, 44, 48
S_WAVE, S_M0X, S_M0W, S_KX, S_KW, S_KS, S_T0, S_T1, S_HO = 52, 53, 54, 55, 56, 57, 58, 59, 60
S_C = 62
S_TAB = 64

def prologue(a, nwg, tab_label, name):
    a.rstamp(); a.stamp()
    a('s_cmp_ge_u32 s2, %d' % nwg)
    a('s_cbranch_scc1 L_end_%s' % name)
    a('s_load_dwordx8 s[4:11], s[0:1], 0')
    a('s_load_dwordx4 s[12:15], s[0:1], 32')
    a('s_load_dwordx2 s[16:17], s[0:1], 48')
    a('s_getpc_b64 s[18:19]')
    a.label('L_pc_%s' % name)
    a('s_add_u32 s18, s18, %s-L_pc_%s' % (tab_label, name))
    a('s_addc_u32 s19, s19, 0')
    a('s_lshl_b32 s3, s2, 6')
    a('s_load_dwordx16 s[%d:%d], s[18:19], s3' % (S_TAB, S_TAB+15))
    a('v_lshrrev_b32 v1, 6, v0')
    a('v_and_b32 v0, 63, v0')
    a('v_readfirstlane_b32 s%d, v1' % S_WAVE)
    for b, sz in ((S_X, XB), (S_WG, WB), (S_WU, WB), (S_WD, WB), (S_OUT, OB), (S_H, HB), (S_DBG, 256), (S_W, WB)):
        a('s_mov_b32 s%d, %d' % (b+2, sz)); a('s_mov_b32 s%d, 0x20000' % (b+3))
    a('s_lshl_b32 s%d, s%d, 10' % (S_M0X, S_WAVE))
    a('s_lshl_b32 s%d, s%d, 12' % (S_M0W, S_WAVE))
    a('s_mov_b32 s%d, 0x%08x' % (S_C, f2u(C2))); a('s_mov_b32 s%d, 0x%08x' % (S_C+1, f2u(C1)))

def prologue_ptrs(a):
    a('s_waitcnt lgkmcnt(0)')
    for b, src in ((S_X, 4), (S_WG, 6), (S_WU, 8), (S_WD, 10), (S_OUT, 12), (S_DBG, 14), (S_H, 16)):
        a('s_mov_b64 s[%d:%d], s[%d:%d]' % (b, b+1, src, src+1))
    a('s_cmp_lt_u32 s%d, 2' % S_WAVE)
    a('s_cselect_b64 s[%d:%d], s[6:7], s[8:9]' % (S_W, S_W+1))

def lane_consts(a, V):
    a('v_lshrrev_b32 v%d, 3, v0' % V['l8']); a('v_and_b32 v%d, 7, v0' % V['p8'])
    a('v_and_b32 v%d, 15, v0' % V['m']); a('v_lshrrev_b32 v%d, 4, v0' % V['g'])
    a('v_bfe_u32 v%d, v0, 2, 2' % V['r']); a('v_and_b32 v%d, 3, v0' % V['c'])

def diag_store(a, slot_base):
    if not a.diag: return
    a.stamp(); a.rstamp()
    a('s_getreg_b32 s98, hwreg(HW_REG_XCC_ID)'); a('v_writelane_b32 v255, s98, 63')
    a('s_mov_b32 s%d, 0x4000000' % (S_H+2))
    a('s_lshl_b32 s98, s2, 2'); a('s_add_u32 s98, s98, s%d' % S_WAVE); a('s_lshl_b32 s98, s98, 8')
    a('s_add_u32 s98, s98, %d' % slot_base)
    a('v_lshlrev_b32 v254, 2, v0')
    a('buffer_store_dword v255, v254, s[%d:%d], s98 offen' % (S_H, S_H+3))
    a('s_waitcnt vmcnt(0)')

def gen_p1(a, nblk, hpol=''):
    nu = 2*nblk
    XSZ = nblk*4096; S = XSZ + 16384
    NST = 10
    ACC = 0+16
    XR = ACC + nu*8; RING = 6
    WF = XR + RING*8
    VX = WF + 32
    VW = VX + nblk
    XA = VW + 4
    WA = XA + 6
    VH = WA + 3
    TMP = (VH + 1 + 3)//4*4
    assert VH <= 253, VH
    V = dict(l8=2, p8=3, m=4, g=5, r=6, c=7)
    lane_consts(a, V)
    t0, t1, t2 = 8, 9, 10
    a('s_lshl_b32 s%d, s%d, 3' % (S_T0, S_WAVE))
    a('v_add_u32 v%d, s%d, v%d' % (t0, S_T0, V['l8']))
    a('v_bfe_u32 v%d, v%d, 1, 3' % (t1, t0))
    a('v_xor_b32 v%d, v%d, v%d' % (t1, t1, V['p8']))
    a('v_mul_u32_u24 v%d, 1280, v%d' % (t0, t0))
    a('v_lshl_add_u32 v%d, v%d, 4, v%d' % (VX, t1, t0))
    a('s_and_b32 s%d, s%d, 1' % (S_T0, S_WAVE)); a('s_lshl_b32 s%d, s%d, 5' % (S_T0, S_T0))
    a('v_add_u32 v%d, s%d, v%d' % (t0, S_T0, V['l8']))
    a('v_mul_u32_u24 v%d, 3456, v%d' % (t0, t0))
    a('v_and_b32 v%d, 2, v%d' % (t1, V['l8']))
    a('v_xor_b32 v%d, v%d, v%d' % (t1, t1, V['p8']))
    a('v_lshl_add_u32 v%d, v%d, 4, v%d' % (VW, t1, t0))
    a('v_xor_b32 v%d, 4, v%d' % (t1, t1))
    a('v_lshl_add_u32 v%d, v%d, 4, v%d' % (VW+1, t1, t0))
    a('v_add_u32 v%d, %d, v%d' % (VW+1, 8*3456, VW+1))
    a('v_add_u32 v%d, %d, v%d' % (VW+2, 16*3456, VW))
    a('v_add_u32 v%d, %d, v%d' % (VW+3, 16*3456, VW+1))
    a('v_lshrrev_b32 v%d, 1, v%d' % (t0, V['m']))
    a('v_xor_b32 v%d, v%d, v%d' % (t0, t0, V['g']))
    a('v_lshlrev_b32 v%d, 4, v%d' % (t0, t0))
    a('v_lshl_add_u32 v%d, v%d, 7, v%d' % (XA, V['m'], t0))
    a('v_xor_b32 v%d, 64, v%d' % (XA+1, XA))
    for b in (1, 2):
        a('v_add_u32 v%d, %d, v%d' % (XA+2*b, b*S, XA)); a('v_add_u32 v%d, %d, v%d' % (XA+2*b+1, b*S, XA+1))
    a('v_lshrrev_b32 v%d, 1, v%d' % (t0, V['r']))
    a('v_and_b32 v%d, 1, v%d' % (t1, V['g']))
    a('v_lshl_or_b32 v%d, v%d, 1, v%d' % (t0, t1, t0))
    a('v_xor_b32 v%d, s%d, v%d' % (t0, S_WAVE, t0))
    a('v_lshlrev_b32 v%d, 5, v%d' % (t0, t0))
    a('v_lshl_add_u32 v%d, v%d, 3, v%d' % (t0, V['c'], t0))
    a('v_lshl_add_u32 v%d, v%d, 3, v%d' % (t1, V['g'], V['r']))
    a('v_lshl_add_u32 v%d, v%d, 7, v%d' % (WA, t1, t0))
    for b in (1, 2): a('v_add_u32 v%d, %d, v%d' % (WA+b, b*S, WA))
    a('v_and_b32 v%d, 1, v%d' % (t0, V['g']))
    a('v_mul_u32_u24 v%d, 55296, v%d' % (t0, t0))
    a('v_lshrrev_b32 v%d, 1, v%d' % (t1, V['g']))
    a('v_lshl_add_u32 v%d, v%d, 8, v%d' % (t0, t1, t0))
    a('v_lshl_add_u32 v%d, v%d, 4, v%d' % (t0, V['m'], t0))
    a('s_lshl_b32 s%d, s%d, 9' % (S_T0, S_WAVE))
    a('v_add_u32 v%d, s%d, v%d' % (VH, S_T0, t0))
    prologue_ptrs(a)
    a.stamp()
    a('v_add_u32 v%d, s%d, v%d' % (VX, S_TAB+0, VX))
    for j in range(4): a('v_add_u32 v%d, s%d, v%d' % (VW+j, S_TAB+1, VW+j))
    for b in range(1, nblk): a('v_add_u32 v%d, %d, v%d' % (VX+b, b*40960, VX))
    a('s_mov_b32 s%d, s%d' % (S_KS, S_TAB+2))
    def kset():
        return ['s_lshl_b32 s%d, s%d, 7' % (S_KX, S_KS), 's_mul_i32 s%d, s%d, %d' % (S_KW, S_KS, 64*3456),
                's_add_u32 s%d, s%d, 1' % (S_KS, S_KS), 's_cmp_eq_u32 s%d, %d' % (S_KS, NST), 's_cselect_b32 s%d, 0, s%d' % (S_KS, S_KS)]
    def dma_items(s):
        base = (s % 3)*S; items = []
        order = []
        for j in range(4): order.append(('w', j))
        for b in range(nblk): order.append(('x', b))
        for n, (kind, i) in enumerate(order):
            def f(kind=kind, i=i, n=n):
                if n == 0:
                    for t in kset(): a(t)
                if kind == 'x':
                    a('s_add_u32 m0, s%d, %d' % (S_M0X, base + i*4096)); a('s_nop 0')
                    a.vmem('buffer_load_dwordx4 v%d, s[%d:%d], s%d offen lds' % (VX+i, S_X, S_X+3, S_KX), ('st', s))
                else:
                    a('s_add_u32 m0, s%d, %d' % (S_M0W, base + XSZ + i*1024)); a('s_nop 0')
                    a.vmem('buffer_load_dwordx4 v%d, s[%d:%d], s%d offen lds' % (VW+i, S_W, S_W+3, S_KW), ('st', s))
            items.append(f)
        return items
    def xread(s, u, ks):
        U = s*nu + u
        r = XR + (U % RING)*8 + ks*4
        a.lds('ds_read_b128 %s, v%d offset:%d' % (vr(r), XA + 2*(s % 3) + ks, u*2048), ('x', U, ks))
    def wread(s, mat, ks, t):
        r = WF + (s % 2)*16 + mat*8 + ks*4 + t*2
        a.lds('ds_read_b64_tr_b16 %s, v%d offset:%d' % (vr(r, 2), WA + s % 3, XSZ + mat*8192 + ks*4096 + t*512), ('w', s, mat, ks))
    def head_reads(s):
        q = [lambda: wread(s,0,0,0), lambda: wread(s,0,0,1), lambda: xread(s,0,0), lambda: wread(s,0,1,0), lambda: wread(s,0,1,1), lambda: xread(s,0,1),
             lambda: wread(s,1,0,0), lambda: wread(s,1,0,1), lambda: wread(s,1,1,0), lambda: wread(s,1,1,1)]
        return q
    for s in range(3):
        for f in dma_items(s): f()
        if s < 2: a('s_barrier')
    a.wait(vm=('st', 0)); a('s_barrier')
    a.stamp()
    D = 4
    rq = head_reads(0)
    for u in range(1, D): rq += [lambda u=u: xread(0,u,0), lambda u=u: xread(0,u,1)]
    for f in rq: f()
    rq = []
    BU = nu - 4
    for s in range(NST):
        dq = dma_items(s+2) if (s >= 1 and s+2 < NST) else []
        nxt = D if s == 0 else nxt
        for u in range(nu):
            U = s*nu + u
            while nxt < nu and nxt <= u + D:
                rq += [lambda s=s, n=nxt: xread(s,n,0), lambda s=s, n=nxt: xread(s,n,1)]; nxt += 1
            xb = XR + (U % RING)*8; wb = WF + (s % 2)*16; ab = ACC + u*8
            for i, (mat, ks) in enumerate(((0,0),(0,1),(1,0),(1,1))):
                need = [('x', U, ks)]
                if u == 0: need.append(('w', s, mat, ks))
                a.wait(lg=need)
                c = '0' if (s == 0 and ks == 0) else vr(ab + mat*4)
                a('v_mfma_f32_16x16x32_bf16 %s, %s, %s, %s' % (vr(ab + mat*4), vr(wb + mat*8 + ks*4), vr(xb + ks*4), c))
                if i == 3 and dq and u <= BU: dq.pop(0)()
                else:
                    n = 2 if len(rq) > 4 else 1
                    for _ in range(n):
                        if rq: rq.pop(0)()
            if u == BU and s+1 < NST:
                assert not rq and nxt == nu
                while dq: dq.pop(0)()
                a.wait(vm=('st', s+1), lg='all'); a('s_barrier')
                a.stamp()
                rq = head_reads(s+1)
                rq += [lambda s=s: xread(s+1,1,0), lambda s=s: xread(s+1,1,1)]
        nxt = 2
    a.stamp()
    a('s_mov_b32 s%d, s%d' % (S_HO, S_TAB+3))
    a('s_nop 7')
    T = XR
    for b in range(nblk):
        o = T + 16 + (b % 4)*4
        for h in range(2):
            ab = ACC + (2*b+h)*8
            for p in range(2):
                g = vr(ab + 2*p, 2); t = vr(T + h*4 + 2*p, 2)
                a('v_pk_mul_f32 %s, %s, %s' % (t, g, g))
        for h in range(2):
            for p in range(2):
                t = vr(T + h*4 + 2*p, 2)
                a('v_pk_fma_f32 %s, %s, s[%d:%d], s[%d:%d] op_sel:[0,0,1] op_sel_hi:[1,0,1]' % (t, t, S_C, S_C+1, S_C, S_C+1))
        for h in range(2):
            ab = ACC + (2*b+h)*8
            for p in range(2):
                g = vr(ab + 2*p, 2); t = vr(T + h*4 + 2*p, 2)
                a('v_pk_mul_f32 %s, %s, %s' % (t, t, g))
        for i in range(8): a('v_exp_f32 v%d, v%d' % (T+i, T+i))
        for i in range(4): a('v_pk_add_f32 %s, %s, 1.0 op_sel_hi:[1,0]' % (vr(T+2*i, 2), vr(T+2*i, 2)))
        for i in range(8): a('v_rcp_f32 v%d, v%d' % (T+i, T+i))
        for h in range(2):
            ab = ACC + (2*b+h)*8
            for p in range(2):
                g = vr(ab + 2*p, 2); t = vr(T + h*4 + 2*p, 2)
                a('v_pk_mul_f32 %s, %s, %s' % (t, t, g))
        for h in range(2):
            ab = ACC + (2*b+h)*8
            for p in range(2):
                uu = vr(ab + 4 + 2*p, 2); t = vr(T + h*4 + 2*p, 2)
                a('v_pk_mul_f32 %s, %s, %s' % (t, t, uu))
        for i in range(4): a('v_cvt_pk_bf16_f32 v%d, v%d, v%d' % (o+i, T+2*i, T+2*i+1))
        a('s_nop 1')
        a('v_permlane16_swap_b32 v%d, v%d' % (o, o+2))
        a('v_permlane16_swap_b32 v%d, v%d' % (o+1, o+3))
        a.vmem('buffer_store_dwordx4 %s, v%d, s[%d:%d], s%d offen %s' % (vr(o), VH, S_H, S_H+3, S_HO, hpol), ('hst', b))
        a('s_add_u32 s%d, s%d, 110592' % (S_HO, S_HO))
    a.stamp()
    if a.diag: a.wait(vm='all')

def gen_p2(a, nun, hpol=''):
    V = dict(l8=2, p8=3, m=4, g=5, r=6, c=7)
    lane_consts(a, V)
    t0, t1 = 8, 9
    VD = 10
    DA = 14
    DT = 18
    VHL, VHT = 22, 23
    VRW, VRR, VO = 24, 25, 26
    HBUF = 28; NHB = 2; assert HBUF % 4 == 0
    ACC = HBUF + NHB*56
    assert ACC + nun*16 <= 254
    a('s_mul_i32 s%d, s%d, 448' % (S_T0, S_WAVE))
    a('v_add_u32 v%d, s%d, v%d' % (t0, S_T0, V['l8']))
    a('v_mul_u32_u24 v%d, 1280, v%d' % (t0, t0))
    a('v_and_b32 v%d, 2, v%d' % (t1, V['l8']))
    a('v_xor_b32 v%d, v%d, v%d' % (t1, t1, V['p8']))
    a('v_lshl_add_u32 v%d, v%d, 4, v%d' % (VD, t1, t0))
    a('v_xor_b32 v%d, 4, v%d' % (t1, t1))
    a('v_lshl_add_u32 v%d, v%d, 4, v%d' % (VD+1, t1, t0))
    a('v_add_u32 v%d, %d, v%d' % (VD+1, 8*1280, VD+1))
    a('v_add_u32 v%d, %d, v%d' % (VD+2, 16*1280, VD))
    a('v_add_u32 v%d, %d, v%d' % (VD+3, 16*1280, VD+1))
    a('v_lshrrev_b32 v%d, 1, v%d' % (t0, V['r']))
    a('v_and_b32 v%d, 1, v%d' % (t1, V['g']))
    a('v_lshl_or_b32 v%d, v%d, 1, v%d' % (t0, t1, t0))
    a('v_lshlrev_b32 v%d, 5, v%d' % (t0, t0))
    a('v_lshl_add_u32 v%d, v%d, 3, v%d' % (t0, V['c'], t0))
    a('v_lshl_add_u32 v%d, v%d, 3, v%d' % (t1, V['g'], V['r']))
    a('v_lshl_add_u32 v%d, v%d, 7, v%d' % (t0, t1, t0))
    a('v_add_u32 v%d, s%d, v%d' % (DA, S_M0W, t0))
    for d in range(1, 4): a('v_xor_b32 v%d, %d, v%d' % (DA+d, d*32, DA))
    a('s_mul_i32 s%d, s%d, 14336' % (S_T0, S_WAVE))
    a('v_lshlrev_b32 v%d, 4, v0' % t0)
    a('v_add_u32 v%d, s%d, v%d' % (VHL, S_T0, t0))
    a('s_cmp_eq_u32 s%d, 3' % S_WAVE)
    a('s_cselect_b32 s%d, 0x40000000, 0' % S_T0)
    a('v_add_u32 v%d, s%d, v%d' % (VHT, S_T0, VHL))
    a('v_xor_b32 v%d, v%d, v%d' % (t0, V['g'], V['m']))
    a('v_lshlrev_b32 v%d, 4, v%d' % (t0, t0))
    a('v_lshl_add_u32 v%d, v%d, 8, v%d' % (t0, V['m'], t0))
    a('s_mul_i32 s%d, s%d, %d' % (S_T0, S_WAVE, nun*4096))
    a('v_add_u32 v%d, s%d, v%d' % (VRW, S_T0, t0))
    a('s_and_b32 s%d, s%d, 1' % (S_T0, S_WAVE)); a('s_lshl_b32 s%d, s%d, 3' % (S_T0, S_T0))
    a('v_add_u32 v%d, s%d, v%d' % (t0, S_T0, V['l8']))
    a('v_lshlrev_b32 v%d, 1, v%d' % (t1, V['p8']))
    a('v_xor_b32 v%d, v%d, v%d' % (t1, t1, t0))
    a('v_lshlrev_b32 v%d, 4, v%d' % (t1, t1))
    a('v_lshl_add_u32 v%d, v%d, 8, v%d' % (t1, t0, t1))
    a('s_lshr_b32 s%d, s%d, 1' % (S_T0, S_WAVE)); a('s_lshl_b32 s%d, s%d, 12' % (S_T0, S_T0))
    a('v_add_u32 v%d, s%d, v%d' % (VRR, S_T0, t1))
    a('v_mul_u32_u24 v%d, 1280, v%d' % (t0, t0))
    a('v_lshl_add_u32 v%d, v%d, 4, v%d' % (VO, V['p8'], t0))
    prologue_ptrs(a)
    a.stamp()
    for q in range(4): a('v_add_u32 v%d, s%d, v%d' % (VD+q, S_TAB+1, VD+q))
    a('v_add_u32 v%d, s%d, v%d' % (VO, S_TAB+1, VO))
    grp = list(range(10)) + [0, 1, 2, 3]
    def wd_dma(j):
        a('s_mov_b32 s%d, %d' % (S_KW, j*40960))
        for q in range(4):
            a('s_add_u32 m0, s%d, %d' % (S_M0W, grp[j]*16384 + q*1024)); a('s_nop 0')
            a.vmem('buffer_load_dwordx4 v%d, s[%d:%d], s%d offen lds' % (VD+q, S_WD, S_WD+3, S_KW), ('wd', j))
    cur = [None]
    def wd_read(j):
        gb = grp[j]*16384; hi = gb//65536
        if cur[0] != hi:
            for d in range(4): a('v_add_u32 v%d, %d, v%d' % (DT+d, hi*65536, DA+d))
            cur[0] = hi
        for d in range(4):
            for t in range(2):
                a.lds('ds_read_b64_tr_b16 %s, v%d offset:%d' % (vr(j*16 + d*4 + t*2, 2, 'a'), DT+d, gb - hi*65536 + t*512), ('wdr', j))
    def h_load_items(u):
        items = []
        for j in range(14):
            def f(j=j):
                if j % 4 == 0:
                    if j == 0: a('s_mul_i32 s%d, s%d, 55296' % (S_HO, S_TAB+4+u))
                    else: a('s_add_u32 s%d, s%d, 4096' % (S_HO, S_HO))
                r = HBUF + (u % NHB)*56 + j*4
                a.vmem('buffer_load_dwordx4 %s, v%d, s[%d:%d], s%d offen offset:%d %s' % (vr(r), VHT if j >= 12 else VHL, S_H, S_H+3, S_HO, (j % 4)*1024, hpol), ('h', u, j))
            items.append(f)
        return items
    for j in range(10): wd_dma(j)
    for j in range(14):
        a.wait(vm=('wd', j))
        wd_read(j)
        if j < 4:
            a.wait(lg='all'); wd_dma(10+j)
        if j == 3:
            for f in h_load_items(0): f()
        if j == 9:
            for f in h_load_items(1): f()
    a.wait(lg='all')
    a.stamp()
    for u in range(nun):
        hb = HBUF + (u % NHB)*56; ab = ACC + u*16
        nx = h_load_items(u+2) if u+2 < nun else []
        for half in range(2):
            js = range(7*half, 7*half+7)
            a.wait(vm=('h', u, js[-1]))
            for d in range(4):
                for j in js:
                    c = '0' if j == 0 else vr(ab + d*4)
                    a('v_mfma_f32_16x16x32_bf16 %s, %s, %s, %s' % (vr(ab + d*4), vr(j*16 + d*4, 4, 'a'), vr(hb + j*4), c))
                    if half == 1 and nx and d*7 + (j-7) in (1, 5, 9, 13, 17, 21, 25): nx.pop(0)()
        for f in nx: f()
        a.stamp()
    a('s_barrier')
    a('s_nop 7')
    for d in range(1, 4): a('v_xor_b32 v%d, %d, v%d' % (DT+d, d*64, VRW))
    a('v_mov_b32 v%d, v%d' % (DT, VRW))
    for u in range(nun):
        for d in range(4):
            a.lds('ds_write_b128 v%d, %s offset:%d' % (DT+d, vr(ACC + u*16 + d*4), u*4096), 'rw')
    a.wait(lg='all'); a('s_barrier')
    a('v_xor_b32 v%d, 16, v%d' % (VRR+2, VRR))
    VRR2 = VRR+2
    T = HBUF
    nround = (nun+1)//2
    hiw = 2*nun*4096
    a('v_add_u32 v%d, %d, v%d' % (DT, hiw, VRR)); a('v_add_u32 v%d, %d, v%d' % (DT+1, hiw, VRR2))
    for rd in range(nround):
        tb = T + (rd % 3)*32
        for w in range(4):
            off = (w % 2)*nun*4096 + rd*8192
            b0, b1 = (VRR, VRR2) if w < 2 else (DT, DT+1)
            a.lds('ds_read_b128 %s, v%d offset:%d' % (vr(tb + w*8), b0, off), ('rr', rd))
            a.lds('ds_read_b128 %s, v%d offset:%d' % (vr(tb + w*8 + 4), b1, off), ('rr', rd))
    for rd in range(nround):
        tb = T + (rd % 3)*32
        u0 = 2*rd; u1 = min(2*rd+1, nun-1)
        a('s_cmp_lt_u32 s%d, 2' % S_WAVE)
        a('s_cselect_b32 s%d, s%d, s%d' % (S_T0, S_TAB+4+u0, S_TAB+4+u1))
        a('s_mul_i32 s%d, s%d, %d' % (S_T0, S_T0, 16*1280))
        if 2*rd+1 >= nun:
            a('s_cselect_b32 s%d, s%d, 0x40000000' % (S_T0, S_T0))
        a.wait(lg=('rr', rd))
        for i in range(4):
            a('v_pk_add_f32 %s, %s, %s' % (vr(tb+2*i, 2), vr(tb+2*i, 2), vr(tb+8+2*i, 2)))
            a('v_pk_add_f32 %s, %s, %s' % (vr(tb+16+2*i, 2), vr(tb+16+2*i, 2), vr(tb+24+2*i, 2)))
        for i in range(4): a('v_pk_add_f32 %s, %s, %s' % (vr(tb+2*i, 2), vr(tb+2*i, 2), vr(tb+16+2*i, 2)))
        for i in range(4): a('v_cvt_pk_bf16_f32 v%d, v%d, v%d' % (tb+8+i, tb+2*i, tb+2*i+1))
        a.vmem('buffer_store_dwordx4 %s, v%d, s[%d:%d], s%d offen' % (vr(tb+8), VO, S_OUT, S_OUT+3, S_T0), 'o')
    a.stamp()
    if a.diag: a.wait(vm='all')

def desc(name):
    return '''.amdhsa_kernel %s
  .amdhsa_next_free_vgpr 512
  .amdhsa_next_free_sgpr 102
  .amdhsa_accum_offset 256
  .amdhsa_group_segment_fixed_size 0
  .amdhsa_kernarg_size 56
  .amdhsa_user_sgpr_count 2
  .amdhsa_user_sgpr_kernarg_segment_ptr 1
  .amdhsa_system_sgpr_workgroup_id_x 1
  .amdhsa_float_denorm_mode_32 3
.end_amdhsa_kernel''' % name

def table(a, label, recs):
    a.raw('.p2align 6'); a.raw('.type %s,@object' % label); a.label(label)
    for r in recs:
        r = list(r) + [0]*(16-len(r))
        a.raw('.long ' + ', '.join(str(int(x)) for x in r))
    a.raw('.size %s, %d' % (label, 64*len(recs)))

def build(diag=False, rot=True):
    a = Asm(); a.diag = diag
    n1, n2 = 216, 220
    hdr = open('standalone__glu_gated_geglu__prompt.s.ref').read().split('\n')[:8]
    for l in hdr: a.raw(l)
    a.raw('; @launch kernel=p1_kernel grid=(%d,1,1) block=(256,1,1) lds=%d' % (n1, 3*(8*4096+16384)))
    a.raw('; @launch kernel=p2_kernel grid=(%d,1,1) block=(256,1,1) lds=163840' % n2)
    a.raw('.amdgcn_target "amdgcn-amd-amdhsa--gfx950"'); a.raw('.text')
    a.raw('.globl p1_kernel\n.p2align 8\n.type p1_kernel,@function'); a.label('p1_kernel')
    prologue(a, n1, 'tab1', 'p1'); gen_p1(a, 8); diag_store(a, 16<<20)
    a.label('L_end_p1'); a('s_endpgm')
    recs = []
    for wg in range(n1):
        x = wg % 8; i = wg // 8
        lin = (x//2)*27 + i
        strip = lin // 4; grp = (x % 2)*4 + lin % 4
        k0 = ((lin % 4)*10//4 + (strip % 7)*10//7) % 10 if rot else 0
        recs.append((grp*256*1280, strip*128, k0, grp*8*110592 + strip*2048))
    table(a, 'tab1', recs)
    a.vm = []; a.lg = []; a.nstamp = 0
    a.raw('.globl p2_kernel\n.p2align 8\n.type p2_kernel,@function'); a.label('p2_kernel')
    prologue(a, n2, 'tab2', 'p2'); gen_p2(a, 6); diag_store(a, 17<<20)
    a.label('L_end_p2'); a('s_endpgm')
    recs = []
    jobs = {x: [] for x in range(8)}
    cnt = [len(range(x, n2, 8)) for x in range(8)]
    alljobs = [(g, 0) for g in range(22)]
    lists = []
    for h in range(2):
        lists.append([(g, 5*h + s) for g in range(22) for s in range(5)])
    order = [0, 2, 4, 6, 1, 3, 5, 7]
    flat = lists[0] + lists[1]; pos = 0
    for x in order:
        jobs[x] = flat[pos:pos+cnt[x]]; pos += cnt[x]
    for wg in range(n2):
        g, s = jobs[wg % 8][wg // 8]
        u0 = min(g*6, 128-6)
        recs.append((0, s*128, 0, 0) + tuple(u0+i for i in range(6)))
    table(a, 'tab2', recs)
    a.raw('.section .rodata,"a"\n.p2align 6'); a.raw(desc('p1_kernel')); a.raw('.p2align 6'); a.raw(desc('p2_kernel'))
    return '\n'.join(a.L) + '\n'

if __name__ == '__main__':
    out = sys.argv[1]
    open(out, 'w').write(build(diag='diag' in sys.argv[2:], rot='norot' not in sys.argv[2:]))
```

```python
import sys, math, struct

M, DM, DF = 2048, 640, 1728
XB, WB, OB = M*DM*2, DM*DF*2, M*DM*2
HB = 128*54*1024
FLAG0 = 8 << 20
WSB = FLAG0 + 270*128
C1 = -2.0*math.sqrt(2.0/math.pi)*math.log2(math.e)
C2 = C1*0.044715
def f2u(x): return struct.unpack('<I', struct.pack('<f', x))[0]
KN = 'standalone__glu_gated_geglu__prompt_kernel'

class P:
    A = 5; G = 3; PACE = 52; LOOK = 11; diag = False; D = 4; PFCODE = True
    LLAT = 900; SLAT = 2000; PUB1 = 2; TOP = 9

class Asm:
    def __init__(s):
        s.L = []; s.reset()
    def reset(s):
        s.vm = []; s.lg = []; s.nstamp = 0; s.t = 0; s.mf = -100
    def __call__(s, t, c=4): s.L.append('    ' + t); s.t += c
    def label(s, t): s.L.append(t + ':')
    def raw(s, t): s.L.append(t)
    def mfma(s, d, a_, b, c):
        s.t = max(s.t, s.mf + 16); s.mf = s.t
        s('v_mfma_f32_16x16x32_bf16 %s, %s, %s, %s' % (d, a_, b, c), 8)
    def vmem(s, t, tag, lat):
        s(t); prev = s.vm[-1][1] if s.vm else 0
        s.vm.append((tag, max(prev, s.t + lat)))
    def lds(s, t, tag): s(t); s.lg.append(tag)
    def vm_ready(s, tags):
        r = None
        for x, t in s.vm:
            if x in tags: r = t
        return r
    def wait(s, vm=None, lg=None):
        parts = []
        if vm is not None:
            if vm == 'all': n = 0 if s.vm else None
            else:
                tags = vm if isinstance(vm, (list, set)) else [vm]
                idx = max([i for i, x in enumerate(s.vm) if x[0] in tags], default=-1)
                n = None if idx < 0 else len(s.vm) - 1 - idx
            if n is not None:
                n = min(n, 63); parts.append('vmcnt(%d)' % n)
                s.t = max(s.t, s.vm[len(s.vm)-1-n][1])
                s.vm = s.vm[len(s.vm)-n:] if n else []
        if lg is not None:
            if lg == 'all': n = 0 if s.lg else None
            else:
                tags = lg if isinstance(lg, (list, set)) else [lg]
                idx = max([i for i, x in enumerate(s.lg) if x in tags], default=-1)
                n = None if idx < 0 else len(s.lg) - 1 - idx
            if n is not None:
                n = min(n, 15); parts.append('lgkmcnt(%d)' % n); s.lg = s.lg[len(s.lg)-n:] if n else []
        if parts: s('s_waitcnt ' + ' '.join(parts))
    def stamp(s, name='', real=False):
        if not P.diag: return
        s('%s s[98:99]' % ('s_memrealtime' if real else 's_memtime'), 0); s('s_waitcnt lgkmcnt(0)', 0); s.lg = []
        s('v_writelane_b32 v255, s98, %d' % s.nstamp, 0)
        s.raw('; stamp %d %s est %d' % (s.nstamp, name, s.t)); s.nstamp += 1

def vr(b, n=4, p='v'): return '%s[%d:%d]' % (p, b, b+n-1)
def sr(b, n=4): return 's[%d:%d]' % (b, b+n-1)

S_X, S_WG, S_WU, S_WD, S_OUT, S_H, S_DBG = 20, 24, 28, 32, 36, 40, 44
S_WAVE, S_M0X, S_M0W, S_KW, S_T0, S_T1, S_HO, S_DO, S_HL = 48, 49, 50, 51, 52, 53, 54, 55, 56
S_RDY = 58
S_C = 62
S_TAB = 64
S_KX = 80
S_SPIN = 90; S_PMIN = 91
T_CLS, T_XO, T_ST, T_K0, T_HO, T_FL, T_DS, T_DR, T_U = [S_TAB+i for i in range(9)]
VXD = 10; VWD = 17; VDD = 19; XA = 23; WA = 29; DA = 32
VH, VHL, VHT, VPA, VPT, VPR, VRD, VO, VGO, VZ = 44, 45, 46, 47, 48, 49, 50, 51, 8, 9
XR = 52; RING = 6
ET = 100; EO = 108
ACCB = 124; ACCA = 156
HBUF = [156, 52]; OWN = 212; ACC2 = 124; RT = 108
def dreg(j): return 160 + 16*j if j < 6 else 16*(j-6)

class Lds:
    def __init__(s):
        s.free = list(range(10)); s.cur = None; s.fill = 4; s.live = {}; s.addr = {}
    def can(s, quad): return bool(s.free) if (quad or s.fill == 4) else True
    def alloc(s, key, quad):
        if quad:
            q = s.free.pop(0); s.live[q] = {key}; s.addr[key] = q*16384; return
        if s.fill == 4:
            s.cur = s.free.pop(0); s.fill = 0; s.live[s.cur] = {'open'}
        s.live[s.cur].add(key); s.addr[key] = s.cur*16384 + s.fill*4096; s.fill += 1
        if s.fill == 4: s.live[s.cur].discard('open')
    def close(s):
        if s.fill < 4:
            s.fill = 4; s.live[s.cur].discard('open'); s._chk(s.cur)
    def _chk(s, q):
        if not s.live[q]: del s.live[q]; s.free.append(q)
    def release(s, key):
        q = s.addr[key]//16384; s.live[q].discard(key); s._chk(q)

def setup_common(a):
    a.stamp('entry_rt', True); a.stamp('entry')
    a('s_cmp_ge_u32 s2, 256'); a('s_cbranch_scc1 L_end')
    a('s_load_dwordx8 s[4:11], s[0:1], 0')
    a('s_load_dwordx4 s[12:15], s[0:1], 32')
    a('s_load_dwordx2 s[16:17], s[0:1], 48')
    a('s_getpc_b64 s[18:19]'); a.label('L_pc')
    a('s_add_u32 s92, s18, jobtab-L_pc'); a('s_addc_u32 s93, s19, 0')
    a('s_lshl_b32 s3, s2, 6')
    a('s_load_dwordx16 %s, s[92:93], s3' % sr(S_TAB, 16))
    a('v_lshrrev_b32 v1, 6, v0'); a('v_lshlrev_b32 v%d, 7, v0' % VPR)
    a('v_and_b32 v0, 63, v0')
    a('v_readfirstlane_b32 s%d, v1' % S_WAVE)
    for b, sz in ((S_X, XB), (S_WG, WB), (S_WU, WB), (S_WD, WB), (S_OUT, OB), (S_H, WSB), (S_DBG, 256)):
        a('s_mov_b32 s%d, %d' % (b+2, sz)); a('s_mov_b32 s%d, 0x20000' % (b+3))
    a('s_lshl_b32 s%d, s%d, 10' % (S_M0X, S_WAVE))
    a('s_lshl_b32 s%d, s%d, 12' % (S_M0W, S_WAVE))
    a('s_mov_b32 s%d, 0x%08x' % (S_C, f2u(C2))); a('s_mov_b32 s%d, 0x%08x' % (S_C+1, f2u(C1)))
    l8, p8, m, g, r, c = 2, 3, 4, 5, 6, 7
    t0, t1 = ET, ET+1
    a('v_lshrrev_b32 v%d, 3, v0' % l8); a('v_and_b32 v%d, 7, v0' % p8)
    a('v_and_b32 v%d, 15, v0' % m); a('v_lshrrev_b32 v%d, 4, v0' % g)
    a('v_bfe_u32 v%d, v0, 2, 2' % r); a('v_and_b32 v%d, 3, v0' % c)
    a('v_mov_b32 v%d, 0' % VZ)
    a('s_lshl_b32 s%d, s%d, 3' % (S_T0, S_WAVE))
    a('v_add_u32 v%d, s%d, v%d' % (t0, S_T0, l8))
    a('v_bfe_u32 v%d, v%d, 1, 3' % (t1, t0))
    a('v_xor_b32 v%d, v%d, v%d' % (t1, t1, p8))
    a('v_mul_u32_u24 v%d, 1280, v%d' % (VXD, t0))
    a('v_lshl_add_u32 v%d, v%d, 4, v%d' % (VXD, t1, VXD))
    a('v_mul_u32_u24 v%d, 3456, v%d' % (t0, t0))
    a('s_and_b32 s%d, s%d, 1' % (S_T0, S_WAVE)); a('s_lshl_b32 s%d, s%d, 2' % (S_T0, S_T0))
    a('v_and_b32 v%d, 2, v%d' % (t1, l8))
    a('v_xor_b32 v%d, v%d, v%d' % (t1, t1, p8))
    a('v_xor_b32 v%d, s%d, v%d' % (VWD, S_T0, t1))
    a('v_lshl_add_u32 v%d, v%d, 4, v%d' % (VWD, VWD, t0))
    a('s_mul_i32 s%d, s%d, 448' % (S_T0, S_WAVE))
    a('v_add_u32 v%d, s%d, v%d' % (t0, S_T0, l8))
    a('v_mul_u32_u24 v%d, 1280, v%d' % (t0, t0))
    a('v_lshl_add_u32 v%d, v%d, 4, v%d' % (VDD, t1, t0))
    a('v_xor_b32 v%d, 64, v%d' % (VDD+1, VDD))
    a('v_add_u32 v%d, %d, v%d' % (VDD+1, 8*1280, VDD+1))
    a('v_lshrrev_b32 v%d, 1, v%d' % (t0, m))
    a('v_xor_b32 v%d, v%d, v%d' % (t0, t0, g))
    a('v_lshlrev_b32 v%d, 4, v%d' % (t0, t0))
    a('v_lshl_add_u32 v%d, v%d, 7, v%d' % (XA, m, t0))
    a('v_xor_b32 v%d, 64, v%d' % (XA+1, XA))
    a('v_lshrrev_b32 v%d, 1, v%d' % (t0, r))
    a('v_and_b32 v%d, 1, v%d' % (t1, g))
    a('v_lshl_or_b32 v%d, v%d, 1, v%d' % (t0, t1, t0))
    a('v_xor_b32 v%d, s%d, v%d' % (t0, S_WAVE, t0))
    a('v_lshlrev_b32 v%d, 5, v%d' % (t0, t0))
    a('v_lshl_add_u32 v%d, v%d, 3, v%d' % (t0, c, t0))
    a('v_lshl_add_u32 v%d, v%d, 3, v%d' % (t1, g, r))
    a('v_lshl_add_u32 v%d, v%d, 7, v%d' % (WA, t1, t0))
    a('s_waitcnt lgkmcnt(0)')
    for b, src in ((S_X, 4), (S_WG, 6), (S_WU, 8), (S_WD, 10), (S_OUT, 12), (S_DBG, 14), (S_H, 16)):
        a('s_mov_b64 s[%d:%d], s[%d:%d]' % (b, b+1, src, src+1))
    a.stamp('ptrs')
    a('v_add_u32 v%d, s%d, v%d' % (VXD, T_XO, VXD))
    a('v_add_u32 v%d, s%d, v%d' % (VWD, T_ST, VWD))
    a('v_add_u32 v%d, %d, v%d' % (VWD+1, 32*3456, VWD))
    a('s_lshl_b32 s%d, s%d, 7' % (S_KX, T_K0))
    a('s_cmp_eq_u32 s%d, 1' % T_CLS); a('s_cbranch_scc1 L_cls1')
    a('s_cmp_eq_u32 s%d, 2' % T_CLS); a('s_cbranch_scc1 L_cls2')

def setup_late(a, cls):
    l8, p8, m, g, r, c = 2, 3, 4, 5, 6, 7
    t0, t1, t2 = ET, ET+1, ET+2
    for w in (1, 2):
        a('v_add_u32 v%d, %d, v%d' % (XA+2*w, w*65536, XA)); a('v_add_u32 v%d, %d, v%d' % (XA+2*w+1, w*65536, XA+1))
        a('v_add_u32 v%d, %d, v%d' % (WA+w, w*65536, WA))
    a('v_add_u32 v%d, s%d, v%d' % (DA, S_M0W, WA))
    for d in range(1, 4): a('v_xor_b32 v%d, %d, v%d' % (DA+d, d*32, DA))
    for w in (1, 2):
        for d in range(4): a('v_add_u32 v%d, %d, v%d' % (DA+4*w+d, w*65536, DA+d))
    for q in range(2): a('v_add_u32 v%d, s%d, v%d' % (VDD+q, T_DS, VDD+q))
    for q in range(2): a('v_add_u32 v%d, %d, v%d' % (VDD+2+q, 16*1280, VDD+q))
    a('v_and_b32 v%d, 1, v%d' % (t0, g))
    a('v_mul_u32_u24 v%d, 55296, v%d' % (t0, t0))
    a('v_lshrrev_b32 v%d, 1, v%d' % (t1, g))
    a('v_lshl_add_u32 v%d, v%d, 8, v%d' % (t0, t1, t0))
    a('v_lshl_add_u32 v%d, v%d, 4, v%d' % (t0, m, t0))
    a('s_lshl_b32 s%d, s%d, 9' % (S_T0, S_WAVE)); a('s_add_u32 s%d, s%d, s%d' % (S_T0, S_T0, T_HO))
    a('v_add_u32 v%d, s%d, v%d' % (VH, S_T0, t0))
    a('s_mul_i32 s%d, s%d, 14336' % (S_T0, S_WAVE))
    a('v_lshlrev_b32 v%d, 4, v0' % t0)
    a('v_add_u32 v%d, s%d, v%d' % (VHL, S_T0, t0))
    a('v_add_u32 v%d, s%d, v%d' % (VRD, S_M0X, t0))
    a('s_cmp_eq_u32 s%d, 3' % S_WAVE)
    a('s_cselect_b32 s%d, 0x40000000, 0' % S_T0)
    a('s_cselect_b32 s%d, 5, 6' % S_T1)
    a('v_add_u32 v%d, s%d, v%d' % (VHT, S_T0, VHL))
    a('v_mul_u32_u24 v%d, 1280, v%d' % (t0, m))
    a('v_lshl_add_u32 v%d, v%d, 4, v%d' % (t0, t1, t0))
    a('s_lshl_b32 s%d, s%d, 5' % (S_T0, S_WAVE)); a('s_add_u32 s%d, s%d, s%d' % (S_T0, S_T0, T_DS))
    a('v_add_u32 v%d, s%d, v%d' % (VO, S_T0, t0))
    a('v_mov_b32 v%d, s%d' % (t0, T_U))
    for i in range(1, 6):
        a('v_cmp_eq_u32 vcc, %d, v%d' % (i, l8))
        a('v_mov_b32 v%d, s%d' % (t2, T_U+i)); a('s_nop 0')
        a('v_cndmask_b32 v%d, v%d, v%d, vcc' % (t0, t0, t2))
    a('v_lshrrev_b32 v%d, 1, v%d' % (t0, t0))
    a('v_mul_u32_u24 v%d, 37, v%d' % (t2, t0))
    a('v_lshrrev_b32 v%d, 8, v%d' % (t2, t2))
    a('v_mul_u32_u24 v%d, 7, v%d' % (VPT, t2))
    a('v_sub_u32 v%d, v%d, v%d' % (VPT, t0, VPT))
    a('v_mul_u32_u24 v%d, 27, v%d' % (t2, t2))
    a('v_min_u32 v%d, s%d, v%d' % (t0, S_T1, p8))
    a('s_mul_i32 s%d, s%d, 7' % (S_T0, S_WAVE))
    a('v_add3_u32 v%d, v%d, v%d, s%d' % (t0, t0, t2, S_T0))
    a('v_lshlrev_b32 v%d, 7, v%d' % (t0, t0))
    a('v_add_u32 v%d, %d, v%d' % (VPA, FLAG0, t0))
    a('s_add_u32 s%d, s%d, %d' % (T_FL, T_FL, FLAG0))
    a('s_lshl_b32 s%d, s%d, 2' % (S_T0, S_WAVE)); a('s_add_u32 s%d, s%d, s%d' % (T_FL, T_FL, S_T0))

def gen_class(a, cls):
    name = 'c%d' % cls
    nblk, nstrip, nun = ((7, 1, 5), (1, 2, 6), (1, 3, 5))[cls]
    A = P.A if cls == 0 else 1
    lds = Lds()
    stream = []
    for s in range(10):
        for st in range(nstrip):
            for ks in range(2):
                for mat in range(2): stream.append(('W', st, s, ks, mat))
            if st == 0:
                for b in range(A): stream.append(('X', b, s))
    for b in range(A, nblk):
        for s in range(10): stream.append(('X', b, s))
    nP1 = len(stream)
    for j in range(14):
        for q in range(4): stream.append(('D', j, q))
    st8 = dict(pos=0, last=-1000, kw=None, armed=None, limit=0, kxn=1, dj=None)
    def need_kx(s):
        while st8['kxn'] <= s:
            i = st8['kxn']
            a('s_add_u32 s%d, s%d, 128' % (S_KX+i, S_KX+i-1))
            a('s_cmp_eq_u32 s%d, 1280' % (S_KX+i))
            a('s_cselect_b32 s%d, 0, s%d' % (S_KX+i, S_KX+i))
            st8['kxn'] += 1
    def can_arm():
        if st8['armed'] or st8['pos'] >= min(len(stream), st8['limit']): return False
        t = stream[st8['pos']]
        if t[0] == 'D':
            if t[2] != 0: return True
            lds.close(); return lds.can(True)
        return lds.can(False)
    def arm():
        t = stream[st8['pos']]; st8['pos'] += 1
        if t[0] == 'W':
            _, st, s, ks, mat = t
            if st8['kw'] != (st, s):
                need_kx(s)
                a('s_mul_i32 s%d, s%d, 1728' % (S_KW, S_KX+s))
                if st: a('s_add_u32 s%d, s%d, %d' % (S_KW, S_KW, st*128))
                st8['kw'] = (st, s)
            lds.alloc(t, False)
            a('s_add_u32 m0, s%d, %d' % (S_M0X, lds.addr[t]))
            ins = 'buffer_load_dwordx4 v%d, %s, s%d offen lds' % (VWD+ks, sr(S_WU if mat else S_WG), S_KW)
        elif t[0] == 'X':
            _, b, s = t
            need_kx(s); lds.alloc(t, False)
            a('s_add_u32 m0, s%d, %d' % (S_M0X, lds.addr[t]))
            ins = 'buffer_load_dwordx4 v%d, %s, s%d offen lds' % (VXD+b, sr(S_X), S_KX+s)
        else:
            _, j, q = t
            if q == 0:
                lds.alloc(('D', j), True); a('s_mov_b32 s%d, %d' % (S_DO, j*40960))
            a('s_add_u32 m0, s%d, %d' % (S_M0W, lds.addr[('D', j)] + q*1024))
            ins = 'buffer_load_dwordx4 v%d, %s, s%d offen lds' % (VDD+q, sr(S_WD), S_DO)
            t = ('D', j)
        st8['armed'] = (ins, t)
    def fire():
        ins, t = st8['armed']; st8['armed'] = None
        a.vmem(ins, t, P.LLAT); st8['last'] = a.t
    def dma_now(n):
        for _ in range(n):
            assert can_arm(), (st8, lds.free)
            arm(); a('s_nop 0'); fire()
    rq = []
    dq = []
    dstate = dict(next=0, maxj=6, rel=[])
    def d_try():
        for j in list(dstate['rel']):
            if ('dr', j) not in a.lg: lds.release(('D', j)); dstate['rel'].remove(j)
        j = dstate['next']
        if dq or j >= dstate['maxj']: return
        if st8['pos'] - (1 if st8['armed'] else 0) < nP1 + 4*(j+1): return
        rdy = a.vm_ready([('D', j)])
        if rdy is not None and rdy > a.t: return
        d_queue(j)
    def d_queue(j):
        ad = lds.addr[('D', j)]; w = ad//65536
        dq.append(lambda: a.wait(vm=('D', j)))
        for d in range(4):
            for t in range(2):
                last = (d == 3 and t == 1)
                def f(d=d, t=t, last=last):
                    a.lds('ds_read_b64_tr_b16 %s, v%d offset:%d' % (vr(dreg(j) + d*4 + t*2, 2, 'a'), DA+4*w+d, ad - w*65536 + t*512), ('dr', j))
                    if last: dstate['rel'].append(j)
                dq.append(f)
        dstate['next'] += 1
    def gap(budget=2):
        n = 0
        if st8['armed']: fire(); n += 1
        while rq and n < budget and (n == 0 or len(rq) > 3): rq.pop(0)(); n += 1
        if n < budget and a.t - st8['last'] >= P.PACE - 20 and can_arm(): arm(); n += 1
        if n == 0 and pub_try(): return
        if n < budget:
            d_try()
            if dq: dq.pop(0)(); n += 1
    def flush_armed():
        if st8['armed']: a('s_nop 0'); fire()
    phases = []
    def wreg_ret(s): return lambda mat, ks: (2*s+ks)*8 + mat*4
    for s in range(10):
        gs = []; wt = []
        for st in range(nstrip):
            wr = wreg_ret(s) if cls == 0 else (lambda mat, ks, st=st, s=s: ((s % 2)*nstrip + st)*16 + ks*8 + mat*4)
            wt += [(('W', st, s, ks, mat), wr(mat, ks)) for mat in range(2) for ks in range(2)]
            for b in range(A):
                for h in range(2):
                    gs.append(dict(acc=ACCA + ((st*A + b)*2 + h)*8, wr=wr, x=('X', b, s), h=h, first=(s == 0), w=(st, s), rev=False))
        phases.append(dict(g=gs, wt=wt, xt=[('X', b, s) for b in range(A)], epi=None))
    phases[-1]['epi'] = [(ACCA + i*16, (i if cls == 0 else 0)*110592 + (0 if cls == 0 else i*2048)) for i in range(A*nstrip)]
    for b in range(A, nblk):
        for hf in range(2):
            gs = []
            for h in range(2):
                for i, s in enumerate(range(5*hf, 5*hf+5)):
                    gs.append(dict(acc=ACCB + ((b-A) % 2)*16 + h*8, wr=wreg_ret(s), x=('X', b, s), h=h, first=(s == 0), w=None, rev=(i % 2 == 1)))
            phases.append(dict(g=gs, wt=[], xt=[('X', b, s) for s in range(5*hf, 5*hf+5)], epi=None))
        phases[-1]['epi'] = [(ACCB + ((b-A) % 2)*16, b*110592)]
    gi = 0
    for ph in phases:
        for g in ph['g']: g['id'] = gi; gi += 1
        ph['tiles'] = [t for t, _ in ph['wt']] + ph['xt']
        ph['end'] = max(stream.index(t) for t in ph['tiles']) + 1
    def xread(g, ks):
        ad = lds.addr[g['x']] + g['h']*2048; w = ad//65536
        a.lds('ds_read_b128 %s, v%d offset:%d' % (vr(XR + (g['id'] % RING)*8 + ks*4), XA+2*w+ks, ad - w*65536), ('x', g['id'], ks))
    def wread(t, reg, tt):
        ad = lds.addr[t]; w = ad//65536
        a.lds('ds_read_b64_tr_b16 %s, v%d offset:%d' % (vr(reg + tt*2, 2, 'a'), WA+w, ad - w*65536 + tt*512), t + (tt,))
    def head_reads(ph, nx):
        q = []; wt = list(ph['wt']); gs = ph['g']
        xs = [(g, ks) for g in gs[:nx] for ks in range(2)]
        for i, (t, reg) in enumerate(wt):
            q += [lambda t=t, reg=reg: wread(t, reg, 0), lambda t=t, reg=reg: wread(t, reg, 1)]
            if i < 2 or i == 3:
                for _ in range(1 if i < 2 else 2):
                    if xs: g, ks = xs.pop(0); q.append(lambda g=g, ks=ks: xread(g, ks))
        q += [lambda g=g, ks=ks: xread(g, ks) for g, ks in xs]
        return q
    pub = dict(done=0, stores=[], hold=False, late=False, tg=(sorted(set([min(P.PUB1, A), A] + list(range(A, 8)))) if cls == 0 else [nstrip]))
    def barrier(vm_tags):
        flush_armed()
        a.wait(vm=list(vm_tags), lg='all')
        a('s_barrier')
    NPUB = nblk*nstrip
    def flag_store(val, track=True):
        if pub['late'] and track and val < NPUB:
            a('s_max_u32 s%d, s%d, %d' % (S_T0, S_PMIN, val)); a('v_mov_b32 v1, s%d' % S_T0)
        else: a('v_mov_b32 v1, %d' % val)
        ins = 'buffer_store_dword v1, v%d, %s, s%d offen sc1' % (VGO, sr(S_H), T_FL)
        if track: a.vmem(ins, 'flag', P.SLAT)
        else: a(ins, 0)
    def pub_try(force=False):
        ok = [cnt for cnt, tag in pub['stores'] if force or (a.vm_ready([tag]) or 0) <= a.t]
        if not ok: return False
        c = max(ok)
        while pub['tg'] and pub['tg'][0] <= pub['done']: pub['tg'].pop(0)
        if c < pub['tg'][0] or pub['hold']: return False
        a.wait(vm=('hs', c))
        flag_store(c if cls == 0 else 1)
        pub['done'] = c; pub['stores'] = [x for x in pub['stores'] if x[0] > c]
        a.raw('; publish %d est %d' % (c, a.t))
        return True
    def check_go():
        a.wait(vm='go')
        lab = 'L_go_%s' % name
        a('v_readfirstlane_b32 s%d, v%d' % (S_T0, VGO)); a('s_mov_b32 s%d, 0' % S_SPIN)
        a.label(lab + 'w')
        a('s_cmp_lg_u32 s%d, 0' % S_T0); a('s_cbranch_scc1 %s' % lab)
        a('s_add_u32 s%d, s%d, 1' % (S_SPIN, S_SPIN)); a('s_cmp_gt_u32 s%d, 0x100000' % S_SPIN); a('s_cbranch_scc1 %s' % lab)
        a('s_sleep 2')
        a('buffer_load_dword v%d, v%d, %s, 0 offen sc1' % (VGO, VZ, sr(S_DBG)))
        a('s_waitcnt vmcnt(0)')
        a('v_readfirstlane_b32 s%d, v%d' % (S_T0, VGO))
        a('s_branch %sw' % lab)
        a.label(lab)
        a('v_lshlrev_b32 v%d, 7, v0' % VGO)
        a('v_cmp_gt_u32 vcc, %d, v0' % nstrip); a('v_mov_b32 v1, 0x40000000'); a('s_nop 0')
        a('v_cndmask_b32 v%d, v1, v%d, vcc' % (VGO, VGO))
    def epilogue(items, pre_store=None):
        a('s_nop 7')
        for n, (ab, hoff) in enumerate(items):
            o = EO + (len(pub['stores']) + pub['done']) % 4*4
            T = ET
            G = [ab + h*8 + 2*p for h in range(2) for p in range(2)]
            def em(t, c=4): a(t, c); gap(1)
            for i in range(4): em('v_pk_mul_f32 %s, %s, %s' % (vr(T+2*i, 2), vr(G[i], 2), vr(G[i], 2)))
            for i in range(4): em('v_pk_fma_f32 %s, %s, s[%d:%d], s[%d:%d] op_sel:[0,0,1] op_sel_hi:[1,0,1]' % (vr(T+2*i, 2), vr(T+2*i, 2), S_C, S_C+1, S_C, S_C+1))
            for i in range(4): em('v_pk_mul_f32 %s, %s, %s' % (vr(T+2*i, 2), vr(T+2*i, 2), vr(G[i], 2)))
            for i in range(8): em('v_exp_f32 v%d, v%d' % (T+i, T+i), 8)
            for i in range(4): em('v_pk_add_f32 %s, %s, 1.0 op_sel_hi:[1,0]' % (vr(T+2*i, 2), vr(T+2*i, 2)))
            for i in range(8): em('v_rcp_f32 v%d, v%d' % (T+i, T+i), 8)
            for i in range(4): em('v_pk_mul_f32 %s, %s, %s' % (vr(T+2*i, 2), vr(T+2*i, 2), vr(G[i], 2)))
            for i in range(4): em('v_pk_mul_f32 %s, %s, %s' % (vr(T+2*i, 2), vr(T+2*i, 2), vr(G[i]+4, 2)))
            for i in range(4): em('v_cvt_pk_bf16_f32 v%d, v%d, v%d' % (o+i, T+2*i, T+2*i+1))
            flush_armed()
            a('s_mov_b32 s%d, %d' % (S_HO, hoff)); a('s_nop 0')
            a('v_permlane16_swap_b32 v%d, v%d' % (o, o+2))
            a('v_permlane16_swap_b32 v%d, v%d' % (o+1, o+3))
            cnt = pub['done'] + len(pub['stores']) + 1
            a.vmem('buffer_store_dwordx4 %s, v%d, %s, s%d offen sc1' % (vr(o), VH, sr(S_H), S_HO), ('hs', cnt), P.SLAT)
            pub['stores'].append((cnt, ('hs', cnt)))
    PL = 'buffer_load_dwordx4 v[4:7], v%d, %s, 0 offen sc1' % (VPA, sr(S_H))
    def poll_issue(): a.vmem(PL, 'poll', P.LLAT)
    def poll_eval(c=4):
        a('v_min_u32 v4, v4, v5', c); a('v_min3_u32 v4, v4, v6, v7', c)
        a('v_cmp_gt_u32 %s, v4, v%d' % (sr(S_RDY, 2), VPT), c); a('s_nop 0', c)
    def poll_take():
        a.wait(vm='poll'); poll_eval()
    slow = []
    def need_unit(u):
        lab = 'L_nu_%s_%d' % (name, u)
        reg = S_RDY + u//4; sh = (u % 4)*8
        tst = ['s_bfe_u32 s%d, s%d, 0x%x' % (S_T0, reg, (8 << 16) | sh), 's_cmp_eq_u32 s%d, 0xff' % S_T0]
        for t in tst: a(t)
        a('s_cbranch_scc0 %ss' % lab)
        a.label(lab)
        pend = pub['done'] < NPUB
        def emit():
            a.label(lab + 's')
            a('s_mov_b32 s%d, 0' % S_SPIN)
            if pend:
                a('s_waitcnt vmcnt(0)'); flag_store(NPUB if cls == 0 else 1, False); a('s_mov_b32 s%d, %d' % (S_PMIN, NPUB))
            a.label(lab + 'w')
            a(PL); a('s_waitcnt vmcnt(0)'); poll_eval()
            for t in tst: a(t)
            a('s_cbranch_scc1 %s' % lab)
            a('s_add_u32 s%d, s%d, 1' % (S_SPIN, S_SPIN)); a('s_cmp_gt_u32 s%d, 0x80000' % S_SPIN); a('s_cbranch_scc0 %sw' % lab)
            a('s_branch %s' % lab)
        slow.append(emit)

    def set_limit(i):
        if i+1 >= len(phases) or phases[i+1]['end'] + P.LOOK >= nP1: st8['limit'] = len(stream); return
        st8['limit'] = phases[i+1]['end'] + P.LOOK
    if cls: a.label('L_cls%d' % cls)
    for b in range(1, nblk): a('v_add_u32 v%d, %d, v%d' % (VXD+b, b*40960, VXD))
    if cls == 2:
        a('s_mov_b32 s%d, %d' % (S_T0, FLAG0))
        for i in range(4): a('v_mov_b32 v%d, 0' % (EO+i))
        a.vmem('buffer_store_dwordx4 %s, v%d, %s, s%d offen sc1' % (vr(EO), VPR, sr(S_H), S_T0), 'rst', P.SLAT)
        a('s_mov_b32 s%d, %d' % (S_T1, FLAG0 + 256*128))
        a.vmem('buffer_store_dwordx4 %s, v%d, %s, s%d offen sc1' % (vr(EO), VPR, sr(S_H), S_T1), 'rst', P.SLAT)
    st8['limit'] = phases[0]['end']; dma_now(phases[0]['end'])
    if P.PFCODE:
        a('s_add_u32 s92, s18, L_code_%s-L_pc' % name); a('s_addc_u32 s93, s19, 0')
        a('s_mov_b32 s94, L_codeend_%s-L_code_%s' % (name, name)); a('s_mov_b32 s95, 0x20000')
        a.vmem('buffer_load_dword v253, v%d, s[92:95], 0 offen' % VPR, 'pf', P.LLAT)
    a('s_barrier')
    st8['limit'] = phases[1]['end']; dma_now(min(phases[1]['end'], 12) - st8['pos'] if st8['pos'] < 12 else 0)
    setup_late(a, cls)
    a.label('L_code_%s' % name)
    dma_now(phases[1]['end'] - st8['pos'])
    barrier(phases[0]['tiles'] + ['rst'])
    if cls == 2:
        a('v_mov_b32 v1, 1'); a('s_mov_b64 exec, 1')
        a.vmem('buffer_store_dword v1, v%d, %s, s%d offen sc1' % (VZ, sr(S_DBG), S_M0X), 'gost', P.SLAT)
        a('s_mov_b64 exec, -1')
    a.stamp('ph0')
    a.t = 0; a.mf = -100; st8['last'] = -1000
    a.vm = [(x, 600) for x, _ in a.vm]
    D = P.D
    for f in head_reads(phases[0], D): f()
    nxt = D
    for pi, ph in enumerate(phases):
        gs = ph['g']; ng = len(gs)
        nph = phases[pi+1] if pi+1 < len(phases) else None
        if pi == 0: set_limit(0)
        if pi == 3: a.vmem('buffer_load_dword v%d, v%d, %s, 0 offen sc1' % (VGO, VZ, sr(S_DBG)), 'go', P.LLAT)
        BU = max(ng - 4, 0) if ph['epi'] is None else ng - 1
        seen = set()
        for u, g in enumerate(gs):
            while nxt < ng and nxt <= u + D:
                rq.extend([lambda g2=gs[nxt]: xread(g2, 0), lambda g2=gs[nxt]: xread(g2, 1)]); nxt += 1
            xb = XR + (g['id'] % RING)*8
            order = ((1,0),(1,1),(0,0),(0,1)) if g['rev'] else ((0,0),(0,1),(1,0),(1,1))
            for i, (mat, ks) in enumerate(order):
                need = [('x', g['id'], ks)]
                if i == 0 and not g['w']: need.append(('x', g['id'], 1))
                if i == 0 and g['w'] in seen: need.append(('x', g['id'], 1))
                if g['w'] and g['w'] not in seen: need += [('W',) + g['w'] + (ks, mat, tt) for tt in range(2)]
                while any(n not in a.lg and n not in done_lds(a) for n in need) and rq: rq.pop(0)()
                a.wait(lg=need)
                c = '0' if (g['first'] and ks == 0) else vr(g['acc'] + mat*4)
                a.mfma(vr(g['acc'] + mat*4), vr(g['wr'](mat, ks), 4, 'a'), vr(xb + ks*4), c)
                gap()
            if g['w']: seen.add(g['w'])
            if u == BU:
                while rq: rq.pop(0)()
                assert nxt == ng
                if nph:
                    flush_armed()
                    if st8['pos'] < nph['end']: dma_now(nph['end'] - st8['pos'])
                    while st8['pos'] < nph['end'] + P.TOP and can_arm(): dma_now(1)
                if pi == 9: check_go()
                barrier(nph['tiles'] if nph else [])
                for t in ph['tiles']: lds.release(t)
                set_limit(pi+1)
                a.stamp('b%d' % (pi+1))
                if nph and ph['epi'] is None:
                    rq.extend(head_reads(nph, 2))
        if ph['epi'] is not None:
            if nph is None:
                dstate['maxj'] = 14
                poll_issue()
                pub['hold'] = (cls == 0)
            epilogue(ph['epi'])
            a.stamp('epi%d' % pi)
            if nph:
                for f in head_reads(nph, D): f()
                nxt = D
        else:
            nxt = 2
    def h_items(u):
        items = []
        for j in range(14):
            def f(j=j):
                if j % 4 == 0:
                    if j == 0: a('s_mul_i32 s%d, s%d, 55296' % (S_HL, T_U+u))
                    else: a('s_add_u32 s%d, s%d, 4096' % (S_HL, S_HL))
                a.vmem('buffer_load_dwordx4 %s, v%d, %s, s%d offen offset:%d sc1' % (vr(HBUF[u % 2] + j*4), VHT if j >= 12 else VHL, sr(S_H), S_HL, (j % 4)*1024), ('h', u, j), P.LLAT)
            items.append(f)
        if u >= 1 and u+1 < nun: items.insert(7, poll_issue)
        return items
    def drain_d(upto_ready_only):
        while True:
            while dq: dq.pop(0)()
            pub_try()
            if can_arm() :
                dma_now(1); continue
            d_try()
            if dq: continue
            if dstate['rel']:
                a.wait(lg='all'); d_try(); continue
            if upto_ready_only and st8['pos'] == len(stream): return
            if dstate['next'] >= 14: return
            d_queue(dstate['next'])
    flush_armed()
    drain_d(True)
    a.stamp('dissued')
    poll_take()
    pub['late'] = True; a('s_mov_b32 s%d, 0' % S_PMIN)
    need_unit(0)
    for f in h_items(0): f()
    need_unit(1)
    for f in h_items(1): f()
    pub['hold'] = False; pub_try()
    a.stamp('h01')
    drain_d(False)
    a.wait(lg='all')
    pub_try(True)
    barrier([])
    a.stamp('pub')
    for d in range(1, 4): a('v_xor_b32 v%d, %d, v%d' % (DA+d, d*1024, VRD))
    a('v_add_u32 v%d, 65536, v%d' % (DA, VRD))
    def red_write(u):
        out = []
        for d in range(1, 4):
            out.append(lambda d=d: a.lds('ds_write_b128 v%d, %s offset:%d' % (DA+d, vr(ACC2 + (u % 2)*12 + (d-1)*4), (u*3 + d-1)*4096 if (u*3+d-1) < 16 else 0), ('rw', u)) if (u*3+d-1) < 16 else
                       (a('v_add_u32 v1, 65536, v%d' % (DA+d)), a.lds('ds_write_b128 v1, %s offset:%d' % (vr(ACC2 + (u % 2)*12 + (d-1)*4), (u*3+d-1)*4096 - 65536), ('rw', u))))
        return out
    def red_pair(u0, u1):
        us = [u0] + ([u1] if u1 is not None else [])
        T = DA + 4
        regs = [RT, RT+4, RT+8, RT+12, 236, 240]
        k = 0
        for u in us:
            for d in range(1, 4):
                off = (u*3 + d-1)*4096
                base = VRD if off < 65536 else DA
                a.lds('ds_read_b128 %s, v%d offset:%d' % (vr(regs[k]), base, off % 65536), ('rr', u)); k += 1
        a('s_mul_i32 s%d, s%d, 20480' % (S_T0, T_U+u0))
        if u1 is not None: a('s_mul_i32 s%d, s%d, 20480' % (S_T1, T_U+u1))
        else: a('s_mov_b32 s%d, 0x40000000' % S_T1)
        a('s_sub_u32 s%d, s%d, s%d' % (S_T1, S_T1, S_T0))
        a('v_bfe_u32 v1, v0, 4, 1')
        a('v_mul_lo_u32 v1, v1, s%d' % S_T1)
        a('v_add3_u32 v1, v1, v%d, s%d' % (VO, S_T0))
        k = 0
        for n, u in enumerate(us):
            a.wait(lg=('rr', u))
            o = OWN + 4*u
            for p in range(2):
                a('v_pk_add_f32 %s, %s, %s' % (vr(o+2*p, 2), vr(o+2*p, 2), vr(regs[k]+2*p, 2)))
                a('v_pk_add_f32 %s, %s, %s' % (vr(regs[k+1]+2*p, 2), vr(regs[k+1]+2*p, 2), vr(regs[k+2]+2*p, 2)))
            for p in range(2): a('v_pk_add_f32 %s, %s, %s' % (vr(o+2*p, 2), vr(o+2*p, 2), vr(regs[k+1]+2*p, 2)))
            for p in range(2): a('v_cvt_pk_bf16_f32 v%d, v%d, v%d' % (244 + (u0 % 4)*2 + 2*n + p, o+2*p, o+2*p+1))
            k += 3
        q = 244 + (u0 % 4)*2
        a('s_nop 1')
        a('v_permlane16_swap_b32 v%d, v%d' % (q, q+2))
        a('v_permlane16_swap_b32 v%d, v%d' % (q+1, q+3))
        a.vmem('buffer_store_dwordx4 %s, v1, %s, 0 offen' % (vr(q), sr(S_OUT)), 'o', 500)
    wq = []
    for u in range(nun):
        hb = HBUF[u % 2]
        nx = []
        if u == nun - 1 or (nun % 2 == 0 and u == nun - 1):
            a('s_nop 7')
            while wq: wq.pop(0)()
            a.wait(lg='all'); a('s_barrier')
            for p in range(0, 4, 2): red_pair(p, p+1)
            a.stamp('red')
        for half in range(2):
            js = list(range(7*half, 7*half+7))
            a.wait(vm=('h', u, js[-1]))
            if half == 1 and u+2 < nun:
                poll_take(); need_unit(u+2); nx = h_items(u+2)
            for d in range(4):
                acc = OWN + 4*u if d == 0 else ACC2 + (u % 2)*12 + (d-1)*4
                for j in js:
                    a.mfma(vr(acc), vr(dreg(j) + d*4, 4, 'a'), vr(hb + j*4), '0' if j == 0 else vr(acc))
                    n = d*7 + (j - 7*half)
                    if half == 0 and wq and n >= 3 and n % 3 == 0: wq.pop(0)()
                    if half == 1 and len(nx) > 7 and n % 3 == 1: nx.pop(0)()
        for f in nx: f()
        wq = red_write(u)
        a.stamp('u%d' % u)
    a('s_nop 7')
    while wq: wq.pop(0)()
    a.wait(lg='all'); a('s_barrier')
    red_pair(4, 5 if nun == 6 else None)
    a.stamp('end')
    if P.diag:
        a.wait(vm='all')
        a.stamp('end2'); a.stamp('end_rt', True)
        a('s_getreg_b32 s98, hwreg(HW_REG_XCC_ID)'); a('v_writelane_b32 v255, s98, 63')
        a('v_writelane_b32 v255, s%d, 62' % T_CLS)
        a('s_mov_b32 s%d, 0x4000000' % (S_H+2))
        a('s_lshl_b32 s98, s2, 2'); a('s_add_u32 s98, s98, s%d' % S_WAVE); a('s_lshl_b32 s98, s98, 8')
        a('s_add_u32 s98, s98, %d' % (16 << 20))
        a('v_lshlrev_b32 v254, 2, v0')
        a('buffer_store_dword v255, v254, %s, s98 offen' % sr(S_H))
        a('s_waitcnt vmcnt(0)')
        a.raw('; nstamp %d cls %d' % (a.nstamp, cls))
    a('s_endpgm')
    for f in slow: f()
    a.label('L_codeend_%s' % name)

_issued = set()
def done_lds(a): return _issued
_old_lds = Asm.lds
def _lds(s, t, tag): _issued.add(tag); _old_lds(s, t, tag)
Asm.lds = _lds

def jobs():
    nspec = [2, 2, 2, 1, 1, 2, 2, 1]
    tiles = [(s, g) for s in range(27) for g in range(9)]
    p1 = {x: [] for x in range(8)}; pos = 0
    for p in range(4):
        n0, n1 = 32 - nspec[2*p], 32 - nspec[2*p+1]
        mine = sorted(tiles[pos:pos+n0+n1], key=lambda t: (t[1], t[0])); pos += n0+n1
        p1[2*p] = [(0,) + t for t in mine[:n0]]; p1[2*p+1] = [(0,) + t for t in mine[n0:]]
    assert pos == 243
    st = 0
    for x in range(8):
        for i in range(nspec[x]):
            c = 2 if (x == 6 and i == 1) else 1
            p1[x].append((c, st, 9)); st += c+1
    assert st == 27
    nmat = [(7,6,7,6), (6,7,6,7), (7,6,6,7), (6,7,6,6), (6,6,7,6)]
    p2 = {}
    def pos_of(u):
        b = u//2
        return (b % 7) if b < 63 else 3.5
    for half in range(2):
        xs = [2*q + half for q in range(4)]
        avail = {x: dict(n=[i for i, j in enumerate(p1[x]) if j[0] != 1], s=[i for i, j in enumerate(p1[x]) if j[0] == 1]) for x in xs}
        s2 = [(x, i) for x in xs for i in avail[x]['s']]
        assert len(s2) == 6, s2
        six = {3: s2[0::2], 4: s2[1::2]}
        for si in range(5):
            ds = 5*half + si
            cus = []
            for q, x in enumerate(xs):
                sp = [i for (xx, i) in six.get(si, []) if xx == x]
                l = [(x, i, 6) for i in sp]
                for _ in range(nmat[si][q] - len(sp)): l.append((x, avail[x]['n'].pop(), 5))
                cus.append(l)
            tot = sum(c[2] for l in cus for c in l); extra = tot - 128
            assert extra in (0, 2), tot
            u0 = 0
            for q, l in enumerate(cus):
                n = sum(c[2] for c in l)
                dup = 1 if (extra and nmat[si][q] == 7) else 0
                us = list(range(u0, u0 + n - dup)); u0 += n - dup
                us.sort(key=lambda u: (pos_of(u), u))
                if dup: us.insert(0, us[0])
                asg = {c: [] for c in l}
                k = 0
                for c in l:
                    if c[2] == 6: asg[c].append(us[k]); k += 1
                for rd in range(5):
                    for c in l: asg[c].append(us[k]); k += 1
                for c in l: p2[(c[0], c[1])] = (ds, asg[c])
            assert u0 == 128
    recs = []
    for wg in range(256):
        x, i = wg % 8, wg // 8
        c, s, g = p1[x][i]
        blk0 = g*7
        k0 = ((s + g) % P.G)*10//P.G
        ds, us = p2[(x, i)]
        us = us + [us[-1]]*(6-len(us))
        recs.append((c, blk0*40960, s*128, k0, blk0*110592 + s*2048, (g*27 + s)*128, ds*128, 0) + tuple(us))
    cover = set((r[6], u) for r in recs for u in r[8:8+(6 if r[0] == 1 else 5)])
    assert len(cover) == 1280
    return recs

def build():
    a = Asm()
    hdr = open('standalone__glu_gated_geglu__prompt.s.ref').read().split('\n')[:8]
    for l in hdr: a.raw(l)
    a.raw('; @launch grid=(256,1,1) block=(256,1,1) lds=163840')
    a.raw('.amdgcn_target "amdgcn-amd-amdhsa--gfx950"'); a.raw('.text')
    a.raw('.globl %s\n.p2align 8\n.type %s,@function' % (KN, KN)); a.label(KN)
    setup_common(a)
    ns = a.nstamp
    for cls in range(3):
        a.reset(); a.nstamp = ns; _issued.clear()
        gen_class(a, cls)
    a.label('L_end'); a('s_endpgm')
    a.raw('.p2align 6'); a.raw('.type jobtab,@object'); a.label('jobtab')
    for r in jobs():
        r = list(r) + [0]*(16-len(r))
        a.raw('.long ' + ', '.join(str(int(x)) for x in r))
    a.raw('.size jobtab, %d' % (64*256))
    a.raw('''.section .rodata,"a"
.p2align 6
.amdhsa_kernel %s
  .amdhsa_next_free_vgpr 512
  .amdhsa_next_free_sgpr 102
  .amdhsa_accum_offset 256
  .amdhsa_group_segment_fixed_size 0
  .amdhsa_kernarg_size 56
  .amdhsa_user_sgpr_count 2
  .amdhsa_user_sgpr_kernarg_segment_ptr 1
  .amdhsa_system_sgpr_workgroup_id_x 1
  .amdhsa_float_denorm_mode_32 3
.end_amdhsa_kernel''' % KN)
    return '\n'.join(a.L) + '\n'

if __name__ == '__main__':
    out = sys.argv[1]
    for kv in sys.argv[2:]:
        if kv == 'diag': P.diag = True
        else:
            k, v = kv.split('='); setattr(P, k, int(v))
    txt = build()
    open(out, 'w').write(txt)
```

```python
import sys, math, struct

M, DM, DF = 2048, 640, 1728
XB, WB, OB = M*DM*2, DM*DF*2, M*DM*2
FLAG0 = 8 << 20
WSB = FLAG0 + 270*128
C1 = -2.0*math.sqrt(2.0/math.pi)*math.log2(math.e)
C2 = C1*0.044715
def f2u(x): return struct.unpack('<I', struct.pack('<f', x))[0]
KN = 'standalone__glu_gated_geglu__prompt_kernel'

class P:
    A = 4; SCHED = 1; PACE = 48; LOOK = 12; TOP = 10; PRO = 16; D = 4; PFCODE = 2; diag = 0
    LLAT = 900; CLAT = 1800; SLAT = 1100; ALAT = 1000
    PUBS = 0; POLLB = 9; HP = 3; SLEEP = 4
    DC = 12; PHIT = 72; PSLOW = 140; PAUSE = 800; XC = 1; XPRE = 3; SPF = 0; SPFAT = 0; PXC = 60; XPAUSE = 1300; PXR = 80; PDC = 200; LA = 12; EPACE = 100; LASTAT = 1; PREH = 8; MAP2 = 0
    STAMPS = 1

class Asm:
    def __init__(s):
        s.L = []; s.reset()
    def reset(s):
        s.vm = []; s.lg = []; s.nstamp = 0; s.t = 0; s.mf = -100; s.sm = None; s.issued = set()
    def __call__(s, t, c=4): s.L.append('    ' + t); s.t += c
    def label(s, t): s.L.append(t + ':')
    def raw(s, t): s.L.append(t)
    def mfma(s, d, a_, b, c):
        s.t = max(s.t, s.mf + 16); s.mf = s.t
        s('v_mfma_f32_16x16x32_bf16 %s, %s, %s, %s' % (d, a_, b, c), 8)
    def vmem(s, t, tag, lat, c=4):
        s(t, c); prev = s.vm[-1][1] if s.vm else 0
        s.vm.append((tag, max(prev, s.t + lat)))
    def lds(s, t, tag): s(t); s.lg.append(tag); s.issued.add(tag)
    def vm_ready(s, tag):
        r = 0
        for x, t in s.vm:
            if x == tag: r = t
        return r
    def wait(s, vm=None, lg=None):
        parts = []
        if vm is not None:
            if vm == 'all': n = 0 if s.vm else None
            else:
                tags = vm if isinstance(vm, list) else [vm]
                idx = max([i for i, x in enumerate(s.vm) if x[0] in tags], default=-1)
                n = None if idx < 0 else len(s.vm) - 1 - idx
            if n is not None:
                n = min(n, 63); parts.append('vmcnt(%d)' % n)
                s.t = max(s.t, s.vm[len(s.vm)-1-n][1])
                s.vm = s.vm[len(s.vm)-n:] if n else []
        if lg is not None:
            if lg == 'all': n = 0 if s.lg else None
            else:
                tags = lg if isinstance(lg, list) else [lg]
                idx = max([i for i, x in enumerate(s.lg) if x in tags], default=-1)
                n = None if idx < 0 else len(s.lg) - 1 - idx
            if n is not None:
                if s.sm is not None: n = 0; s.t = max(s.t, s.sm); s.sm = None
                n = min(n, 15); parts.append('lgkmcnt(%d)' % n); s.lg = s.lg[len(s.lg)-n:] if n else []
        if parts: s('s_waitcnt ' + ' '.join(parts))
    def stamp(s, name='', real=False, lvl=1):
        if not P.diag or lvl > P.STAMPS:
            s.raw('; mark %s est %d' % (name, s.t)); return
        s('%s s[98:99]' % ('s_memrealtime' if (real or (P.diag == 2 and name not in ('entry', 'end2'))) else 's_memtime'), 0); s('s_waitcnt lgkmcnt(0)', 0)
        s('v_writelane_b32 v255, s98, %d' % s.nstamp, 0)
        s.raw('; stamp %d %s est %d' % (s.nstamp, name, s.t)); s.nstamp += 1

def vr(b, n=4, p='v'): return '%s[%d:%d]' % (p, b, b+n-1)
def sr(b, n=4): return 's[%d:%d]' % (b, b+n-1)

S_X, S_WG, S_WU, S_WD, S_OUT, S_H, S_DBG = 20, 24, 28, 32, 36, 40, 44
S_WAVE, S_M0X, S_M0W, S_KW, S_T0, S_T1, S_HO, S_DO, S_HL, S_FV = 48, 49, 50, 51, 52, 53, 54, 55, 56, 57
S_RDY = 58; S_C = 62; S_TAB = 64; S_KX = 80; S_SPIN = 90; S_JO = 4
T_CLS, T_XO, T_ST, T_K0, T_HO, T_FL, T_DS, T_DR, T_U = [S_TAB+i for i in range(9)]
T_O0 = S_TAB+14; T_K1 = S_TAB+15
VGO, VZ = 8, 9
VXD = 10; VWD = 17; VDD = 19; XA = 23; WA = 29; DA = 32
VH, VHL, VHT, VPA, VPT, VPR, VRD, VO = 44, 45, 46, 47, 48, 49, 50, 51
XR = 52; RING = 6; ET = 100
def acc1(b): return 204 - 16*b
HB3 = [('a', 0), ('a', 56), ('v', 52)]; ACC2 = 112; OWN = 108; OQ = 132; RT = 8

class Lds:
    def __init__(s):
        s.free = list(range(10)); s.cur = None; s.fill = 4; s.live = {}; s.addr = {}
    def can(s, quad): return bool(s.free) if (quad or s.fill == 4) else True
    def alloc(s, key, quad):
        if quad:
            q = s.free.pop(0); s.live[q] = {key}; s.addr[key] = q*16384; return
        if s.fill == 4:
            s.cur = s.free.pop(0); s.fill = 0; s.live[s.cur] = {'open'}
        s.live[s.cur].add(key); s.addr[key] = s.cur*16384 + s.fill*4096; s.fill += 1
        if s.fill == 4: s.live[s.cur].discard('open')
    def close(s):
        if s.fill < 4:
            s.fill = 4; s.live[s.cur].discard('open'); s._chk(s.cur)
    def _chk(s, q):
        if not s.live[q]: del s.live[q]; s.free.append(q)
    def release(s, key):
        q = s.addr[key]//16384; s.live[q].discard(key); s._chk(q)

def setup_common(a):
    a.stamp('entry_rt', True, 0); a.stamp('entry', False, 0)
    a('s_cmp_ge_u32 s2, 256'); a('s_cbranch_scc1 L_end')
    a('s_load_dwordx8 s[4:11], s[0:1], 0')
    a('s_load_dwordx4 s[12:15], s[0:1], 32')
    a('s_load_dwordx2 s[16:17], s[0:1], 48')
    a('s_getpc_b64 s[18:19]'); a.label('L_pc')
    a('s_add_u32 s92, s18, jobtab-L_pc'); a('s_addc_u32 s93, s19, 0')
    a('s_lshl_b32 s3, s2, 6')
    a('s_load_dwordx16 %s, s[92:93], s3' % sr(S_TAB, 16))
    a('v_lshrrev_b32 v1, 6, v0'); a('v_lshlrev_b32 v%d, 7, v0' % VPR)
    a('v_and_b32 v0, 63, v0')
    a('v_readfirstlane_b32 s%d, v1' % S_WAVE)
    for b, sz in ((S_X, XB), (S_WG, WB), (S_WU, WB), (S_WD, WB), (S_OUT, OB), (S_H, WSB), (S_DBG, 256)):
        a('s_mov_b32 s%d, %d' % (b+2, sz)); a('s_mov_b32 s%d, 0x20000' % (b+3))
    a('s_lshl_b32 s%d, s%d, 10' % (S_M0X, S_WAVE))
    a('s_lshl_b32 s%d, s%d, 12' % (S_M0W, S_WAVE))
    a('s_mov_b32 s%d, 0x%08x' % (S_C, f2u(C2))); a('s_mov_b32 s%d, 0x%08x' % (S_C+1, f2u(C1)))
    l8, p8, m, g, r, c = 2, 3, 4, 5, 6, 7
    t0, t1 = ET, ET+1
    a('v_lshrrev_b32 v%d, 3, v0' % l8); a('v_and_b32 v%d, 7, v0' % p8)
    a('v_and_b32 v%d, 15, v0' % m); a('v_lshrrev_b32 v%d, 4, v0' % g)
    a('v_bfe_u32 v%d, v0, 2, 2' % r); a('v_and_b32 v%d, 3, v0' % c)
    a('v_mov_b32 v%d, 0' % VZ)
    a('s_lshl_b32 s%d, s%d, 3' % (S_T0, S_WAVE))
    a('v_add_u32 v%d, s%d, v%d' % (t0, S_T0, l8))
    a('v_bfe_u32 v%d, v%d, 1, 3' % (t1, t0))
    a('v_xor_b32 v%d, v%d, v%d' % (t1, t1, p8))
    a('v_mul_u32_u24 v%d, 1280, v%d' % (VXD, t0))
    a('v_lshl_add_u32 v%d, v%d, 4, v%d' % (VXD, t1, VXD))
    for b in range(1, 7): a('v_add_u32 v%d, %d, v%d' % (VXD+b, b*40960, VXD))
    a('v_mul_u32_u24 v%d, 3456, v%d' % (t0, t0))
    a('s_and_b32 s%d, s%d, 1' % (S_T0, S_WAVE)); a('s_lshl_b32 s%d, s%d, 2' % (S_T0, S_T0))
    a('v_and_b32 v%d, 2, v%d' % (t1, l8))
    a('v_xor_b32 v%d, v%d, v%d' % (t1, t1, p8))
    a('v_xor_b32 v%d, s%d, v%d' % (VWD, S_T0, t1))
    a('v_lshl_add_u32 v%d, v%d, 4, v%d' % (VWD, VWD, t0))
    a('v_add_u32 v%d, %d, v%d' % (VWD+1, 32*3456, VWD))
    a('s_mul_i32 s%d, s%d, 448' % (S_T0, S_WAVE))
    a('v_add_u32 v%d, s%d, v%d' % (t0, S_T0, l8))
    a('v_mul_u32_u24 v%d, 1280, v%d' % (t0, t0))
    a('v_lshl_add_u32 v%d, v%d, 4, v%d' % (VDD, t1, t0))
    a('v_xor_b32 v%d, 64, v%d' % (VDD+1, VDD))
    a('v_add_u32 v%d, %d, v%d' % (VDD+1, 8*1280, VDD+1))
    a('v_lshrrev_b32 v%d, 1, v%d' % (t0, m))
    a('v_xor_b32 v%d, v%d, v%d' % (t0, t0, g))
    a('v_lshlrev_b32 v%d, 4, v%d' % (t0, t0))
    a('v_lshl_add_u32 v%d, v%d, 7, v%d' % (XA, m, t0))
    a('v_xor_b32 v%d, 64, v%d' % (XA+1, XA))
    a('v_lshrrev_b32 v%d, 1, v%d' % (t0, r))
    a('v_and_b32 v%d, 1, v%d' % (t1, g))
    a('v_lshl_or_b32 v%d, v%d, 1, v%d' % (t0, t1, t0))
    a('v_xor_b32 v%d, s%d, v%d' % (t0, S_WAVE, t0))
    a('v_lshlrev_b32 v%d, 5, v%d' % (t0, t0))
    a('v_lshl_add_u32 v%d, v%d, 3, v%d' % (t0, c, t0))
    a('v_lshl_add_u32 v%d, v%d, 3, v%d' % (t1, g, r))
    a('v_lshl_add_u32 v%d, v%d, 7, v%d' % (WA, t1, t0))
    for w in (1, 2):
        a('v_add_u32 v%d, %d, v%d' % (XA+2*w, w*65536, XA)); a('v_add_u32 v%d, %d, v%d' % (XA+2*w+1, w*65536, XA+1))
        a('v_add_u32 v%d, %d, v%d' % (WA+w, w*65536, WA))
    a('v_add_u32 v%d, s%d, v%d' % (DA, S_M0W, WA))
    for d in range(1, 4): a('v_xor_b32 v%d, %d, v%d' % (DA+d, d*32, DA))
    for w in (1, 2):
        for d in range(4): a('v_add_u32 v%d, %d, v%d' % (DA+4*w+d, w*65536, DA+d))
    a('s_waitcnt lgkmcnt(0)')
    for b, src, off, sz in ((S_X, 4, T_XO, XB), (S_WG, 6, T_ST, WB), (S_WU, 8, T_ST, WB)):
        a('s_add_u32 s%d, s%d, s%d' % (b, src, off)); a('s_addc_u32 s%d, s%d, 0' % (b+1, src+1))
        a('s_sub_u32 s%d, %d, s%d' % (b+2, sz, off))
    a.stamp('ptrs')
    a('s_cmp_eq_u32 s%d, 1' % T_CLS); a('s_cbranch_scc1 L_cls1')
    a('s_cmp_eq_u32 s%d, 2' % T_CLS); a('s_cbranch_scc1 L_cls2')

def setup_ptrs(a):
    for b, src in ((S_WD, 10), (S_OUT, 12), (S_DBG, 14), (S_H, 16)):
        a('s_mov_b64 s[%d:%d], s[%d:%d]' % (b, b+1, src, src+1))

def setup_late(a, cls):
    l8, p8, m, g, r, c = 2, 3, 4, 5, 6, 7
    t0, t1, t2 = ET, ET+1, ET+2
    for q in range(2): a('v_add_u32 v%d, s%d, v%d' % (VDD+q, T_DS, VDD+q))
    for q in range(2): a('v_add_u32 v%d, %d, v%d' % (VDD+2+q, 16*1280, VDD+q))
    a('v_and_b32 v%d, 1, v%d' % (t0, g))
    a('v_mul_u32_u24 v%d, 55296, v%d' % (t0, t0))
    a('v_lshrrev_b32 v%d, 1, v%d' % (t1, g))
    a('v_lshl_add_u32 v%d, v%d, 8, v%d' % (t0, t1, t0))
    a('v_lshl_add_u32 v%d, v%d, 4, v%d' % (t0, m, t0))
    a('s_lshl_b32 s%d, s%d, 9' % (S_T0, S_WAVE)); a('s_add_u32 s%d, s%d, s%d' % (S_T0, S_T0, T_HO))
    a('v_add_u32 v%d, s%d, v%d' % (VH, S_T0, t0))
    a('s_mul_i32 s%d, s%d, 14336' % (S_T0, S_WAVE))
    a('v_lshlrev_b32 v%d, 4, v0' % t0)
    a('v_add_u32 v%d, s%d, v%d' % (VHL, S_T0, t0))
    a('v_add_u32 v%d, s%d, v%d' % (VRD, S_M0X, t0))
    a('s_cmp_eq_u32 s%d, 3' % S_WAVE)
    a('s_cselect_b32 s%d, 5, 6' % S_T1)
    a('s_movk_i32 s%d, 14336' % S_HL); a('s_cselect_b32 s%d, 12288, s%d' % (S_HL, S_HL))
    a('s_lshl_b32 s%d, s%d, 10' % (S_T0, T_DR))
    for j in range(14):
        a('s_cmp_ge_u32 s%d, s%d' % (S_T0, S_HL)); a('s_cselect_b32 s%d, 0x2000000, s%d' % (S_JO+j, S_T0))
        if j < 13:
            a('s_add_u32 s%d, s%d, 1024' % (S_T0, S_T0)); a('s_cmp_eq_u32 s%d, 14336' % S_T0); a('s_cselect_b32 s%d, 0, s%d' % (S_T0, S_T0))
    a('v_mul_u32_u24 v%d, 1280, v%d' % (t0, m))
    a('v_lshl_add_u32 v%d, v%d, 4, v%d' % (t0, t1, t0))
    a('s_lshl_b32 s%d, s%d, 5' % (S_T0, S_WAVE)); a('s_add_u32 s%d, s%d, s%d' % (S_T0, S_T0, T_DS))
    a('v_add_u32 v%d, s%d, v%d' % (VO, S_T0, t0))
    a('v_mov_b32 v%d, s%d' % (t0, T_U))
    for i in range(1, 6):
        a('v_cmp_eq_u32 vcc, %d, v%d' % (i, l8))
        a('v_mov_b32 v%d, s%d' % (t2, T_U+i)); a('s_nop 0')
        a('v_cndmask_b32 v%d, v%d, v%d, vcc' % (t0, t0, t2))
    a('v_lshrrev_b32 v%d, 1, v%d' % (t0, t0))
    a('v_mul_u32_u24 v%d, 37, v%d' % (t2, t0))
    a('v_lshrrev_b32 v%d, 8, v%d' % (t2, t2))
    a('v_mul_u32_u24 v%d, 7, v%d' % (VPT, t2))
    a('v_sub_u32 v%d, v%d, v%d' % (VPT, t0, VPT))
    a('v_mul_u32_u24 v%d, 27, v%d' % (t2, t2))
    a('v_min_u32 v%d, s%d, v%d' % (t0, S_T1, p8))
    a('s_mul_i32 s%d, s%d, 7' % (S_T0, S_WAVE))
    a('v_add3_u32 v%d, v%d, v%d, s%d' % (t0, t0, t2, S_T0))
    a('v_lshlrev_b32 v%d, 7, v%d' % (t0, t0))
    a('v_add_u32 v%d, %d, v%d' % (VPA, FLAG0, t0))
    a('s_add_u32 s%d, s%d, %d' % (T_FL, T_FL, FLAG0))
    a('s_lshl_b32 s%d, s%d, 2' % (S_T0, S_WAVE)); a('s_add_u32 s%d, s%d, s%d' % (T_FL, T_FL, S_T0))

XCOLD = [1, 6, 8]

def gen_class(a, cls):
    name = 'c%d' % cls
    nblk, nstrip, nun = ((7, 1, 5), (1, 2, 6), (1, 3, 5))[cls]
    A = P.A if cls == 0 else 1
    retain = A < nblk
    NPUB = nblk*nstrip
    lds = Lds()
    nacc = A*nstrip
    dd = [('a', 160+16*i, 0) for i in range(6)] + [('v', 220, 0), ('v', 236, 0)]
    if not retain: dd.append(('a', 144, 0))
    dd += [('v', acc1(b), 0) for b in range(NPUB, 5)] + [('v', acc1(b), b+1) for b in range(min(NPUB, 5))]
    if retain: dd.append(('a', 144, 99))
    assert len(dd) == 14
    def dreg(j, o, n): return vr(dd[j][1] + o, n, dd[j][0])
    stream = []
    for s in range(10):
        for st in range(nstrip):
            for ks in range(2):
                for mat in range(2): stream.append([('W', st, s, ks, mat), P.PACE, P.LLAT])
            if st == 0:
                for b in range(A): stream.append([('X', b, s), P.PACE, P.LLAT])
    nA = len(stream)
    Dt = [('D', j, q) for j in range(14) for q in range(4)]
    if retain:
        cold = XCOLD if P.XC else []
        for b in range(A, nblk):
            pass
        stream += [[('X', b, s), P.PXC, P.CLAT] for s in cold for b in range(A, nblk)]
        rest = [[('X', b, s), P.PXR, P.LLAT] for b in range(A, nblk) for s in range(10) if s not in cold]
        nb = P.XPRE*(10 - len(cold))
        rest[0][1] = P.XPAUSE
        stream += rest[:nb]
        stream += [[t, P.PDC, P.CLAT] for t in Dt[:P.DC]]
        l = rest[nb:] + [[t, -P.PHIT, P.LLAT] for t in Dt[P.DC:]]
        l[0][1] = P.PAUSE; stream += l
    else:
        for i, t in enumerate(Dt):
            stream.append([t, P.PACE if cls else P.PDC if i < P.DC else (P.PAUSE if i == P.DC else -P.PHIT), P.CLAT if i < P.DC else P.LLAT])
    tiles = [x[0] for x in stream]
    lastX = max(i for i, t in enumerate(tiles) if t[0] != 'D')
    dst = dict(next=0, avail=0, rel=[], relb=[])
    st8 = dict(pos=0, last=-10000, kw=None, armed=None, limit=0, kxn=0, slow=0, epi=False)
    def need_kx(s):
        while st8['kxn'] <= s:
            i = st8['kxn']
            a('s_bfe_u32 s%d, s%d, 0x%x' % (S_KX+i, T_K0 if i < 8 else T_K1, (4 << 16) | (4*(i % 8))))
            a('s_lshl_b32 s%d, s%d, 7' % (S_KX+i, S_KX+i))
            st8['kxn'] += 1
    def can_arm():
        if st8['armed'] or st8['pos'] >= min(len(stream), st8['limit']): return False
        t = tiles[st8['pos']]
        if st8['pos'] > lastX: lds.close()
        if t[0] == 'D':
            if t[2] != 0: return True
            return bool(dst['relb']) or len(lds.free) > 0
        return lds.can(False)
    def arm():
        t, _, lat = stream[st8['pos']]; st8['pos'] += 1
        if t[0] == 'W':
            _, st, s, ks, mat = t
            if st8['kw'] != (st, s):
                need_kx(s)
                a('s_mul_i32 s%d, s%d, 1728' % (S_KW, S_KX+s))
                if st: a('s_add_u32 s%d, s%d, %d' % (S_KW, S_KW, st*128))
                st8['kw'] = (st, s)
            lds.alloc(t, False)
            a('s_add_u32 m0, s%d, %d' % (S_M0X, lds.addr[t]))
            ins = 'buffer_load_dwordx4 v%d, %s, s%d offen lds' % (VWD+ks, sr(S_WU if mat else S_WG), S_KW)
        elif t[0] == 'X':
            _, b, s = t
            need_kx(s); lds.alloc(t, False)
            a('s_add_u32 m0, s%d, %d' % (S_M0X, lds.addr[t]))
            ins = 'buffer_load_dwordx4 v%d, %s, s%d offen lds' % (VXD+b, sr(S_X), S_KX+s)
        else:
            _, j, q = t
            if q == 0:
                if dst['relb']:
                    lds.release(('D', dst['relb'].pop(0))); lds.free.insert(0, lds.free.pop())
                lds.alloc(('D', j), True); a('s_mul_i32 s%d, s%d, 40' % (S_DO, S_JO+j))
            a('s_add_u32 m0, s%d, %d' % (S_M0W, lds.addr[('D', j)] + q*1024))
            ins = 'buffer_load_dwordx4 v%d, %s, s%d offen lds' % (VDD+q, sr(S_WD), S_DO)
        st8['armed'] = (ins, t, lat)
    fired = set()
    def fire():
        ins, t, lat = st8['armed']; st8['armed'] = None
        a.vmem(ins, t, lat, 30 if st8['epi'] else 4); st8['last'] = a.t; fired.add(t)
    def flush_armed():
        if st8['armed']: a('s_nop 0'); fire()
    def dma_now(n=1):
        flush_armed()
        for _ in range(n):
            assert can_arm(), (st8, lds.free, lds.live)
            arm(); a('s_nop 0'); fire()
    def pace():
        g = stream[st8['pos']][1]
        if g > 0: return g
        g = -g
        if a.t < st8['slow']: g = max(g, P.PSLOW)
        if st8['epi']: g = max(g, P.EPACE)
        return g
    rq = []; dq = []; nst = [0]
    def d_release():
        for j in list(dst['rel']):
            if ('dr', j) not in a.lg:
                dst['rel'].remove(j)
                if st8['pos'] > lastX: lds.release(('D', j))
                else: dst['relb'].append(j)
    def d_try(force=False):
        d_release()
        j = dst['next']
        if dq or j >= 14 or dd[j][2] > max(dst['avail'], nst[0]) or ('D', j, 3) not in fired: return
        if not force and a.vm_ready(('D', j, 3)) > a.t: return
        ad = lds.addr[('D', j)]; w = ad//65536
        dq.append(lambda: a.wait(vm=('D', j, 3)))
        for d in range(4):
            for t in range(2):
                def f(d=d, t=t):
                    a.lds('ds_read_b64_tr_b16 %s, v%d offset:%d' % (dreg(j, d*4 + t*2, 2), DA+4*w+d, ad - w*65536 + t*512), ('dr', j))
                    if d == 3 and t == 1: dst['rel'].append(j)
                dq.append(f)
        dst['next'] += 1
    pubs = [int(c) for c in str(P.PUBS)] if P.PUBS else sorted(set([2, A] + list(range(A, 8))))
    pub = dict(done=0, stores=[], tg=(pubs if cls == 0 else [nstrip]))
    def flag_atomic(val):
        a('s_mov_b32 s%d, %d' % (S_FV, val))
        for st in range(nstrip):
            a('s_atomic_umax s%d, s[%d:%d], s%d%s' % (S_FV, S_H, S_H+1, T_FL, ' offset:%d' % (128*st) if st else ''))
    def pub_try(force=False):
        if not pub['tg']: return False
        ok = [cnt for cnt in pub['stores'] if a.vm_ready(('hs', cnt)) <= a.t or force]
        if not ok or max(ok) < pub['tg'][0]: return False
        c = max(ok)
        a.wait(vm=('hs', c))
        if c == NPUB and (P.LASTAT or cls):
            if a.lg: a.wait(lg='all')
            flag_atomic(c if cls == 0 else 1); a.sm = a.t + P.ALAT
        else:
            a('v_mov_b32 v1, %d' % c)
            a.vmem('buffer_atomic_umax v1, v%d, %s, s%d offen sc1' % (VGO, sr(S_H), T_FL), 'flag', P.SLAT)
            st8['slow'] = max(st8['slow'], a.t + P.SLAT//2)
        pub['done'] = c; pub['stores'] = [x for x in pub['stores'] if x > c]
        pub['tg'] = [x for x in pub['tg'] if x > c]
        a.raw('; publish %d est %d' % (c, a.t))
        return True
    def gap(budget=2):
        n = 0
        if st8['armed']: fire(); n += 1
        while rq and n < budget and (n == 0 or len(rq) > 3): rq.pop(0)(); n += 1
        if n < budget and can_arm() and a.t - st8['last'] >= pace() - 20: arm(); n += 1
        if n == 0 and pub_try(): return
        if n < budget:
            d_try()
            if dq: dq.pop(0)(); n += 1
    phases = []
    for s in range(10):
        gs = []; wt = []
        for st in range(nstrip):
            if retain: wr = lambda mat, ks, s=s: (2*s+ks)*8 + mat*4
            else: wr = lambda mat, ks, st=st, s=s: ((s % 2)*nstrip + st)*16 + ks*8 + mat*4
            wt += [(('W', st, s, ks, mat), wr(mat, ks)) for mat in range(2) for ks in range(2)]
            for b in range(A):
                for h in range(2):
                    gs.append(dict(acc=acc1(st*A + b) + h*8, wr=wr, x=('X', b, s), h=h, first=(s == 0), w=(st, s), rev=False))
        phases.append(dict(g=gs, wt=wt, xt=[('X', b, s) for b in range(A)], epi=None))
    phases[-1]['epi'] = [(acc1(i), i*110592 if cls == 0 else i*2048) for i in range(nacc)]
    def bphase(bl, ss, first):
        gs = []
        for b in bl:
            for h in range(2):
                for i, s in enumerate(ss):
                    gs.append(dict(acc=acc1(b) + h*8, wr=(lambda mat, ks, s=s: (2*s+ks)*8 + mat*4), x=('X', b, s), h=h,
                                   first=(first and i == 0), w=None, rev=(i % 2 == 1)))
        phases.append(dict(g=gs, wt=[], xt=[('X', b, s) for b in bl for s in ss], epi=None))
    if retain:
        if cold: bphase(range(A, nblk), cold, True)
        for b in range(A, nblk):
            so = [s for s in range(10) if s not in cold]
            if cold: bphase([b], so, False)
            else: bphase([b], so[:5], True); bphase([b], so[5:], False)
            phases[-1]['epi'] = [(acc1(b), b*110592)]
    gi = 0
    for ph in phases:
        for g in ph['g']: g['id'] = gi; gi += 1
        ph['tiles'] = [t for t, _ in ph['wt']] + ph['xt']
        ph['end'] = max(tiles.index(t) for t in ph['tiles']) + 1
    def xread(g, ks):
        ad = lds.addr[g['x']] + g['h']*2048; w = ad//65536
        a.lds('ds_read_b128 %s, v%d offset:%d' % (vr(XR + (g['id'] % RING)*8 + ks*4), XA+2*w+ks, ad - w*65536), ('x', g['id'], ks))
    def wread(t, reg, tt):
        ad = lds.addr[t]; w = ad//65536
        a.lds('ds_read_b64_tr_b16 %s, v%d offset:%d' % (vr(reg + tt*2, 2, 'a'), WA+w, ad - w*65536 + tt*512), t + (tt,))
    def head_reads(ph, nx):
        q = []
        xs = [(g, ks) for g in ph['g'][:nx] for ks in range(2)]
        for i, (t, reg) in enumerate(ph['wt']):
            q += [lambda t=t, reg=reg: wread(t, reg, 0), lambda t=t, reg=reg: wread(t, reg, 1)]
            if i < 2 or i == 3:
                for _ in range(1 if i < 2 else 2):
                    if xs: g, ks = xs.pop(0); q.append(lambda g=g, ks=ks: xread(g, ks))
        q += [lambda g=g, ks=ks: xread(g, ks) for g, ks in xs]
        return q
    def barrier(vm_tags):
        flush_armed()
        a.wait(vm=list(vm_tags), lg='all')
        d_release()
        a('s_barrier')
        for j in dst['relb']: lds.release(('D', j))
        dst['relb'] = []
    slow = []
    def check_go():
        a.wait(vm='go')
        lab = 'L_go_%s' % name
        a('v_readfirstlane_b32 s%d, v%d' % (S_T0, VGO))
        a('v_lshlrev_b32 v%d, 24, v0' % VGO)
        a('s_cmp_eq_u32 s%d, 0' % S_T0); a('s_cbranch_scc1 %ss' % lab)
        a.label(lab)
        def emit():
            a.label(lab + 's')
            a('s_mov_b32 s%d, 0' % S_SPIN)
            a.label(lab + 'w')
            a('s_sleep 2')
            a('buffer_load_dword v1, v%d, %s, 0 offen sc1' % (VZ, sr(S_DBG)))
            a('s_waitcnt vmcnt(0)')
            a('v_readfirstlane_b32 s%d, v1' % S_T0)
            a('s_add_u32 s%d, s%d, 1' % (S_SPIN, S_SPIN)); a('s_cmp_gt_u32 s%d, 0x80000' % S_SPIN); a('s_cbranch_scc1 %s' % lab)
            a('s_cmp_eq_u32 s%d, 0' % S_T0); a('s_cbranch_scc1 %sw' % lab)
            a('s_branch %s' % lab)
        slow.append(emit)
    def epilogue(items, tailq):
        st8['epi'] = True
        a('s_nop 7' if len(items) == 1 else 's_nop 1')
        for n, (ab, hoff) in enumerate(items):
            T = ET
            G = [ab + h*8 + 2*p for h in range(2) for p in range(2)]
            def em(t, c=4): a(t, c); gap(1)
            for i in range(4): em('v_pk_mul_f32 %s, %s, %s' % (vr(T+2*i, 2), vr(G[i], 2), vr(G[i], 2)))
            for i in range(4): em('v_pk_fma_f32 %s, %s, s[%d:%d], s[%d:%d] op_sel:[0,0,1] op_sel_hi:[1,0,1]' % (vr(T+2*i, 2), vr(T+2*i, 2), S_C, S_C+1, S_C, S_C+1))
            for i in range(4): em('v_pk_mul_f32 %s, %s, %s' % (vr(T+2*i, 2), vr(T+2*i, 2), vr(G[i], 2)))
            for i in range(8): em('v_exp_f32 v%d, v%d' % (T+i, T+i), 8)
            for i in range(4): em('v_pk_add_f32 %s, %s, 1.0 op_sel_hi:[1,0]' % (vr(T+2*i, 2), vr(T+2*i, 2)))
            for i in range(8): em('v_rcp_f32 v%d, v%d' % (T+i, T+i), 8)
            if n == len(items)-1: rq.extend(tailq)
            for i in range(4): em('v_pk_mul_f32 %s, %s, %s' % (vr(T+2*i, 2), vr(T+2*i, 2), vr(G[i], 2)))
            for i in range(4): em('v_pk_mul_f32 %s, %s, %s' % (vr(T+2*i, 2), vr(T+2*i, 2), vr(G[i]+4, 2)))
            for i in range(4): em('v_cvt_pk_bf16_f32 v%d, v%d, v%d' % (ab+i, T+2*i, T+2*i+1))
            flush_armed()
            a('s_mov_b32 s%d, %d' % (S_HO, hoff)); a('s_nop 0')
            a('v_permlane16_swap_b32 v%d, v%d' % (ab, ab+2))
            a('v_permlane16_swap_b32 v%d, v%d' % (ab+1, ab+3))
            nst[0] += 1
            a.vmem('buffer_store_dwordx4 %s, v%d, %s, s%d offen sc1' % (vr(ab), VH, sr(S_H), S_HO), ('hs', nst[0]), P.SLAT, 20)
            pub['stores'].append(nst[0]); st8['slow'] = a.t + P.SLAT
        st8['epi'] = False
    PL = 'buffer_load_dwordx4 v[4:7], v%d, %s, 0 offen sc1' % (VPA, sr(S_H))
    def rdy_test(u): return ['s_bfe_u32 s%d, s%d, 0x%x' % (S_T0, S_RDY + u//4, (8 << 16) | ((u % 4)*8)), 's_cmp_eq_u32 s%d, 0xff' % S_T0]
    def poll_issue(u=None):
        if u is None:
            a('s_mov_b64 %s, 0' % sr(S_RDY, 2)); a.vmem(PL, 'poll', P.LLAT); return
        for t in rdy_test(u): a(t)
        a('s_cselect_b32 s%d, 0x40000000, 0' % S_T1)
        a.vmem('buffer_load_dwordx4 v[4:7], v%d, %s, s%d offen sc1' % (VPA, sr(S_H), S_T1), 'poll', P.LLAT)
    def poll_eval():
        a('v_min_u32 v4, v4, v5'); a('v_min3_u32 v4, v4, v6, v7')
        a('v_cmp_gt_u32 vcc, v4, v%d' % VPT); a('s_nop 0'); a('s_or_b64 %s, %s, vcc' % (sr(S_RDY, 2), sr(S_RDY, 2)))
    def need_unit(u):
        lab = 'L_nu_%s_%d' % (name, u)
        tst = rdy_test(u)
        for t in tst: a(t)
        a('s_cbranch_scc0 %ss' % lab)
        a.label(lab)
        pend = pub['done'] < NPUB
        assert nst[0] == NPUB
        def emit():
            a.label(lab + 's')
            a('s_mov_b32 s%d, 0' % S_SPIN)
            if pend:
                a('s_waitcnt vmcnt(0) lgkmcnt(0)'); flag_atomic(NPUB if cls == 0 else 1)
            a.label(lab + 'w')
            a('s_lshl_b64 exec, 0xff, %d' % (8*u)); a(PL); a('s_mov_b64 exec, -1'); a('s_waitcnt vmcnt(0) lgkmcnt(0)'); poll_eval()
            for t in tst: a(t)
            a('s_cbranch_scc1 %s' % lab)
            if P.SLEEP: a('s_sleep %d' % P.SLEEP)
            a('s_add_u32 s%d, s%d, 1' % (S_SPIN, S_SPIN)); a('s_cmp_gt_u32 s%d, 0x80000' % S_SPIN); a('s_cbranch_scc0 %sw' % lab)
            a('s_branch %s' % lab)
        slow.append(emit)
    def set_limit(i):
        if i+1 >= len(phases) or phases[i+1]['end'] + P.LOOK >= nA + (9 if retain else 0): st8['limit'] = len(stream); return
        st8['limit'] = phases[i+1]['end'] + P.LOOK
    def pfcode(nm):
        a('s_add_u32 s92, s18, L_code_%s-L_pc' % nm); a('s_addc_u32 s93, s19, 0')
        a('s_mov_b32 s94, L_codeend_%s-L_code_%s' % (nm, nm)); a('s_mov_b32 s95, 0x20000')
        a.vmem('buffer_load_dword v253, v%d, s[92:95], 0 offen' % VPR, 'pf', P.LLAT)

    if cls: a.label('L_cls%d' % cls)
    if cls == 2:
        setup_ptrs(a)
        for i in range(4): a('v_mov_b32 v%d, 0' % (108+i))
        a('s_mov_b32 s%d, %d' % (S_T0, FLAG0)); a('s_mov_b32 s%d, %d' % (S_T1, FLAG0 + 256*128))
        a.vmem('buffer_store_dwordx4 %s, v%d, %s, s%d offen sc1' % (vr(108), VPR, sr(S_H), S_T0), 'rst', P.SLAT)
        a.vmem('buffer_store_dwordx4 %s, v%d, %s, s%d offen sc1' % (vr(108), VPR, sr(S_H), S_T1), 'rst', P.SLAT)
    if P.PFCODE == 2 and cls: pfcode('c0')
    st8['limit'] = phases[0]['end']; dma_now(phases[0]['end'])
    if P.PFCODE == 1 or (P.PFCODE == 2 and cls): pfcode(name)
    a('s_barrier')
    st8['limit'] = len(stream)
    dma_now(max(0, min(12, P.PRO) - st8['pos']))
    if cls != 2: setup_ptrs(a)
    setup_late(a, cls)
    a.label('L_code_%s' % name)
    def spf():
        a('s_lshl_b32 s%d, s%d, 7' % (S_T0, S_WAVE))
        if retain and P.SPF & 1:
            nx = -(-(nblk-A)*320//(27*4))
            a('s_mul_i32 s%d, s%d, %d' % (S_T1, T_ST, nx*4)); a('s_add_u32 s%d, s%d, s%d' % (S_T1, S_T1, S_T0))
            for n in range(nx): a('s_buffer_load_dword s%d, %s, s%d offset:%d' % (S_SPIN, sr(S_X), S_T1, A*40960 + n*512))
        if P.SPF & 2:
            a('s_mul_i32 s%d, s2, 8704' % S_HO); a('s_add_u32 s%d, s%d, s%d' % (S_HO, S_HO, S_T0))
            for n in range(17): a('s_buffer_load_dword s%d, %s, s%d offset:%d' % (S_SPIN, sr(S_WD), S_HO, n*512))
        a.sm = 0
    if P.SPF and P.SPFAT == 0: spf()
    dma_now(max(0, max(P.PRO, phases[0]['end'] + 5) - st8['pos']))
    if P.SPF and P.SPFAT == 1: spf()
    barrier(phases[0]['tiles'] + ['rst'])
    if cls == 2:
        a('v_mov_b32 v1, 1'); a('s_mov_b64 exec, 1')
        a.vmem('buffer_store_dword v1, v%d, %s, s%d offen sc1' % (VZ, sr(S_DBG), S_M0X), 'gost', P.SLAT)
        a('s_mov_b64 exec, -1')
    a.stamp('ph0')
    a.t = 0; a.mf = -100; st8['last'] = -10000
    a.vm = [(x, 600) for x, _ in a.vm]
    D = P.D
    for f in head_reads(phases[0], D): f()
    nxt = D
    set_limit(0)
    for pi, ph in enumerate(phases):
        gs = ph['g']; ng = len(gs)
        nph = phases[pi+1] if pi+1 < len(phases) else None
        if pi == 4: a.vmem('buffer_load_dword v%d, v%d, %s, 0 offen sc1' % (VGO, VZ, sr(S_DBG)), 'go', P.LLAT)
        BU = max(ng - 4, 0)
        seen = set()
        for u, g in enumerate(gs):
            while nxt < ng and nxt <= u + D:
                rq.extend([lambda g2=gs[nxt]: xread(g2, 0), lambda g2=gs[nxt]: xread(g2, 1)]); nxt += 1
            xb = XR + (g['id'] % RING)*8
            order = ((1,0),(1,1),(0,0),(0,1)) if g['rev'] else ((0,0),(0,1),(1,0),(1,1))
            for i, (mat, ks) in enumerate(order):
                need = [('x', g['id'], ks)]
                if i == 0 and (not g['w'] or g['w'] in seen): need.append(('x', g['id'], 1))
                if g['w'] and g['w'] not in seen: need += [('W',) + g['w'] + (ks, mat, tt) for tt in range(2)]
                while any(n not in a.issued for n in need): rq.pop(0)()
                a.wait(lg=need)
                c = '0' if (g['first'] and ks == 0) else vr(g['acc'] + mat*4)
                a.mfma(vr(g['acc'] + mat*4), vr(g['wr'](mat, ks), 4, 'a'), vr(xb + ks*4), c)
                gap()
            if g['w']: seen.add(g['w'])
            late = ph['epi'] is not None and nph is not None
            if u == BU and not (late and pi == 9):
                while rq: rq.pop(0)()
                assert nxt == ng
                if nph:
                    flush_armed()
                    while st8['pos'] < nph['end']: dma_now()
                    while st8['pos'] < min(nph['end'] + P.TOP, nA if cls == 0 else 999) and can_arm(): dma_now()
                if pi == 8: check_go()
                barrier(nph['tiles'] if nph else [])
                for t in ph['tiles']: lds.release(t)
                set_limit(pi+1)
                a.stamp('b%d' % (pi+1), lvl=2)
                if nph and not late: rq.extend(head_reads(nph, 2))
        if ph['epi'] is not None:
            a.stamp('m%d' % pi)
            if nph is None and retain: dd[13] = dd[13][:2] + (0,)
            if pi == 9 and nph:
                barrier([])
                for t in ph['tiles']: lds.release(t)
                set_limit(pi+1)
                epilogue(ph['epi'][:-1], [])
                flush_armed()
                while st8['pos'] < nph['end']: dma_now()
                barrier(nph['tiles'])
                a('s_nop 0')
                epilogue(ph['epi'][-1:], head_reads(nph, D))
            else:
                if nph is None and cls == 0 and retain: poll_issue()
                epilogue(ph['epi'], head_reads(nph, D) if nph else [])
            while rq: rq.pop(0)()
            nxt = D
            a.stamp('e%d' % pi)
        else:
            nxt = 2
    dst['avail'] = 99
    flush_armed()
    a.raw('; D tiles left at P1 end: %d, next read group %d' % (len(stream) - st8['pos'], dst['next']))
    def hreg(u, j): p, b = HB3[u % 3]; return vr(b + 4*j, 4, p)
    hq = []
    for u in range(nun):
        def ctl(u=u):
            a.wait(vm='poll'); poll_eval(); need_unit(u)
            a('s_mul_i32 s%d, s%d, 55296' % (S_HL, T_U+u)); a('v_add_u32 v%d, s%d, v%d' % (VHT, S_HL, VHL))
            a.stamp('n%d' % u, lvl=2)
        hq.append((u, -1, ctl))
        for j in range(14):
            if j == 14 - P.POLLB and u < nun-1: hq.append((u, j, lambda u=u: poll_issue(u+1)))
            hq.append((u, j, lambda u=u, j=j: a.vmem('buffer_load_dwordx4 %s, v%d, %s, s%d offen sc1' % (hreg(u, j), VHT, sr(S_H), S_JO+j), ('h', u, j), P.LLAT)))
    prog = [0, 0, 4 + P.LA]
    def h_pop(n=1):
        for _ in range(n):
            if hq and (hq[0][0]-3, hq[0][1]) < (prog[0], prog[1]) and 14*hq[0][0] + hq[0][1] < prog[2]: hq.pop(0)[2]()
    polled = [cls == 0 and retain]
    def d_step():
        while dq: dq.pop(0)()
        if st8['pos'] >= len(stream): return False
        if not polled[0] and pub['done'] == NPUB and len(stream) - st8['pos'] <= P.POLLB: poll_issue(); polled[0] = True
        if can_arm(): dma_now(); return True
        d_try()
        if dq: return True
        if dst['rel']: a.wait(lg='all'); d_release(); return True
        d_try(True); assert dq
        return True
    k = 0
    while k < P.PREH:
        pub_try()
        n0 = len(a.vm)
        if not d_step():
            if not polled[0]: break
            h_pop()
        k += max(0, len(a.vm) - n0) if len(a.vm) != n0 else 0
        if not hq or 14*hq[0][0] + hq[0][1] >= prog[2]: break
    while True:
        d_try()
        if not dq: break
        while dq: dq.pop(0)()
    pub_try(True)
    assert pub['done'] == NPUB
    a.stamp('pub')
    while d_step(): pass
    if not polled[0]: poll_issue()
    a.stamp('dissued', lvl=2)
    while dst['next'] < 14 or dq:
        d_try()
        if not dq:
            if hq and 14*hq[0][0] + hq[0][1] < prog[2]: h_pop(); continue
            d_try(True)
        while dq: dq.pop(0)()
    a.wait(lg='all')
    a.stamp('dread')
    for d in range(1, 4): a('v_xor_b32 v%d, %d, v%d' % (DA+d, d*1024, VRD))
    for d in range(0, 4): a('v_add_u32 v%d, 65536, v%d' % (DA+4+d, DA+d if d else VRD))
    a('v_bfe_u32 v%d, v0, 4, 1' % (DA+8))
    def acc2(u, d): return vr(OWN + 4*u) if d == 0 else vr(ACC2 + (u % 2)*12 + (d-1)*4, 4, 'a')
    def red_write(u, d):
        off = (u*3 + d-1)*4096
        a.lds('ds_write_b128 v%d, %s offset:%d' % (DA + d + 4*(off//65536), acc2(u, d), off % 65536), ('rw', u))
    def red_items(u0, u1, q):
        us = [u0] + ([u1] if u1 is not None else [])
        it = []
        for n, u in enumerate(us):
            for d in range(1, 4):
                off = (u*3 + d-1)*4096
                it.append(lambda n=n, u=u, d=d, off=off: a.lds('ds_read_b128 %s, v%d offset:%d' % (vr(RT + 12*n + 4*(d-1)), VRD if off < 65536 else DA+4, off % 65536), ('rr', u)))
        S0, S1 = S_KW, S_DO
        it.append(lambda: a('s_mov_b32 s%d, s%d' % (S0, T_O0)) if u0 == 0 else a('s_mul_i32 s%d, s%d, 20480' % (S0, T_U+u0)))
        it.append(lambda: a('s_mul_i32 s%d, s%d, 20480' % (S1, T_U+u1)) if u1 is not None else a('s_mov_b32 s%d, 0x40000000' % S1))
        it.append(lambda: a('s_sub_u32 s%d, s%d, s%d' % (S1, S1, S0)))
        it.append(lambda: a('v_mul_lo_u32 v1, v%d, s%d' % (DA+8, S1)))
        it.append(lambda: a('v_add3_u32 v1, v1, v%d, s%d' % (VO, S0)))
        for n, u in enumerate(us):
            o = OWN + 4*u; r = RT + 12*n
            it.append(lambda u=u: a.wait(lg=('rr', u)))
            for i in range(4): it.append(lambda i=i, r=r: a('v_add_f32 v%d, v%d, v%d' % (r+i, r+i, r+4+i)))
            for i in range(4): it.append(lambda i=i, r=r, o=o: a('v_add_f32 v%d, v%d, v%d' % (o+i, o+i, r+8+i)))
            for i in range(4): it.append(lambda i=i, r=r, o=o: a('v_add_f32 v%d, v%d, v%d' % (o+i, o+i, r+i)))
            for p in range(2): it.append(lambda n=n, p=p, o=o: a('v_cvt_pk_bf16_f32 v%d, v%d, v%d' % (q + 2*n + p, o+2*p, o+2*p+1)))
        def fin():
            a('s_nop 1')
            a('v_permlane16_swap_b32 v%d, v%d' % (q, q+2))
            a('v_permlane16_swap_b32 v%d, v%d' % (q+1, q+3))
            a.vmem('buffer_store_dwordx4 %s, v1, %s, 0 offen' % (vr(q), sr(S_OUT)), 'o', 400)
        it.append(fin)
        return it
    wq = []; red = []
    CH = [(0, 4), (4, 7), (7, 11), (11, 14)]
    for u in range(nun):
        last = u == nun - 1
        for ci, (j0, j1) in enumerate(CH):
            prog[0], prog[1] = u, j0
            while hq and 14*hq[0][0] + hq[0][1] < 14*u + j1 + P.LA: h_pop()
            prog[2] = 14*u + j1 + P.LA + (CH[(ci+1) % 4][1] - CH[(ci+1) % 4][0])
            if u == 1 and ci == 0: a('s_barrier')
            if ci == 1 and u in (2, 4):
                assert not wq and not red
                a.wait(lg='all'); a('s_barrier')
                red = red_items(u-2, u-1, OQ + (u-2)*2)
            a.wait(vm=('h', u, j1-1))
            n = 0
            for d in ((1, 2, 3, 0) if (last and ci == 3) else (0, 1, 2, 3)):
                for j in range(j0, j1):
                    a.mfma(acc2(u, d), dreg(j, d*4, 4), hreg(u, j), '0' if j == 0 else acc2(u, d))
                    n += 1
                    if wq and n >= 9 and n % 2 == 0: wq.pop(0)()
                    elif n % P.HP == 1 and hq: h_pop()
                    else:
                        for _ in range(2):
                            if red: red.pop(0)()
        wq = [lambda u=u, d=d: red_write(u, d) for d in range(1, 4)]
        a.stamp('u%d' % u, lvl=(1 if last or u == 0 else 2))
    while red: red.pop(0)()
    wq.pop(0)(); a('s_nop 1'); wq.pop(0)(); a('s_nop 2'); wq.pop(0)()
    a.wait(lg='all'); a('s_barrier')
    for f in red_items(4, 5 if nun == 6 else None, OQ): f()
    a.stamp('end')
    if P.diag:
        a.wait(vm='all')
        a.stamp('end2', False, 0); a.stamp('end_rt', True, 0)
        a('s_getreg_b32 s98, hwreg(HW_REG_XCC_ID)'); a('v_writelane_b32 v255, s98, 63')
        a('v_writelane_b32 v255, s%d, 62' % T_CLS); a('v_writelane_b32 v255, s%d, 61' % T_K0)
        a('s_mov_b32 s%d, 0x4000000' % (S_H+2))
        a('s_lshl_b32 s98, s2, 2'); a('s_add_u32 s98, s98, s%d' % S_WAVE); a('s_lshl_b32 s98, s98, 8')
        a('s_add_u32 s98, s98, %d' % (16 << 20))
        a('v_lshlrev_b32 v254, 2, v0')
        a('buffer_store_dword v255, v254, %s, s98 offen' % sr(S_H))
        a('s_waitcnt vmcnt(0)')
        a.raw('; nstamp %d cls %d' % (a.nstamp, cls))
        if P.diag == 2: a.raw('; realtime stamps')
    a('s_endpgm')
    for f in slow: f()
    a.label('L_codeend_%s' % name)

SCH = {1: [[0,2,1,3,6,4,5,7,8,9], [0,1,4,2,3,8,6,5,9,7], [1,3,0,2,7,5,4,6,8,9], [1,0,5,2,3,9,7,4,6,8]],
       5: [[0,1,2,3,4,5,6,7,8,9]]}
def jobs():
    nspec = [2, 2, 2, 1, 1, 2, 2, 1]
    tiles = [(s, g) for s in range(27) for g in range(9)]
    p1 = {x: [] for x in range(8)}; pos = 0
    for p in range(4):
        n0, n1 = 32 - nspec[2*p], 32 - nspec[2*p+1]
        mine = sorted(tiles[pos:pos+n0+n1], key=lambda t: (t[1], t[0])); pos += n0+n1
        p1[2*p] = [(0,) + t for t in mine[:n0]]; p1[2*p+1] = [(0,) + t for t in mine[n0:]]
    assert pos == 243
    st = 0
    for x in range(8):
        for i in range(nspec[x]):
            c = 2 if (x == 6 and i == 1) else 1
            p1[x].append((c, st, 9)); st += c+1
    assert st == 27
    nmat = [(7,6,7,6), (6,7,6,7), (7,6,6,7), (6,7,6,6), (6,6,7,6)]
    p2 = {}; drot = {}; dupc = set()
    def pos_of(u):
        b = u//2
        return (b % 7) if b < 63 else 3.5
    for half in range(2):
        xs = [2*q + half for q in range(4)]
        avail = {x: [i for i, j in enumerate(p1[x]) if j[0] != 1] for x in xs}
        s2 = [(x, i) for x in xs for i, j in enumerate(p1[x]) if j[0] == 1]
        assert len(s2) == 6, s2
        six = {3: s2[0::2], 4: s2[1::2]}
        for si in range(5):
            ds = 5*half + si
            cus = []
            for q, x in enumerate(xs):
                sp = [i for (xx, i) in six.get(si, []) if xx == x]
                l = [(x, i, 6) for i in sp]
                for _ in range(nmat[si][q] - len(sp)): l.append((x, avail[x].pop(), 5))
                cus.append(l)
            extra = sum(c[2] for l in cus for c in l) - 128
            assert extra in (0, 2)
            u0 = 0
            for q, l in enumerate(cus):
                n = sum(c[2] for c in l)
                dup = 1 if (extra and nmat[si][q] == 7) else 0
                us = list(range(u0, u0 + n - dup)); u0 += n - dup
                us.sort(key=lambda u: (pos_of(u), u))
                if dup: us.insert(0, us[0]); dupc.add((l[0][0], l[0][1]))
                asg = {c: [] for c in l}
                k = 0
                for c in l:
                    if c[2] == 6: asg[c].append(us[k]); k += 1
                for rd in range(5):
                    for c in l: asg[c].append(us[k]); k += 1
                for n_, c in enumerate(l):
                    p2[(c[0], c[1])] = (ds, asg[c]); drot[(c[0], c[1])] = ((n_ + si) % len(l))*14//len(l)
            assert u0 == 128
    recs = []
    sch = SCH[P.SCHED]
    if len(sch) > 1: assert set(o[i] for o in sch for i in XCOLD) == set(range(10))
    for wg in range(256):
        x, i = wg % 8, wg // 8
        c, s, g = p1[x][i]
        blk0 = g*7
        order = sch[(s + g) % len(sch)]
        assert sorted(order) == list(range(10))
        k0 = sum(order[i] << (4*i) for i in range(8)); k1 = order[8] | (order[9] << 4)
        ds, us = p2[(x, i)]
        us = us + [us[-1]]*(6-len(us))
        recs.append((c, blk0*40960, s*128, k0, blk0*110592 + s*2048, (g*27 + s)*128, ds*128, drot[(x, i)]) + tuple(us) + (0x40000000 if (x, i) in dupc else us[0]*20480, k1))
    cover = [(r[6], u) for r in recs for u in r[(9 if r[14] == 0x40000000 else 8):8+(6 if r[0] == 1 else 5)]]
    assert len(cover) == 1280 and len(set(cover)) == 1280
    return recs

def build():
    a = Asm()
    hdr = open('standalone__glu_gated_geglu__prompt.s.ref').read().split('\n')[:8]
    for l in hdr: a.raw(l)
    a.raw('; @launch grid=(256,1,1) block=(256,1,1) lds=163840')
    a.raw('.amdgcn_target "amdgcn-amd-amdhsa--gfx950"'); a.raw('.text')
    a.raw('.globl %s\n.p2align 8\n.type %s,@function' % (KN, KN)); a.label(KN)
    setup_common(a)
    ns = a.nstamp
    for cls in range(3):
        a.reset(); a.nstamp = ns
        gen_class(a, cls)
    a.label('L_end'); a('s_endpgm')
    a.raw('.p2align 6'); a.raw('.type jobtab,@object'); a.label('jobtab')
    for r in jobs(): a.raw('.long ' + ', '.join(str(int(x)) for x in r))
    a.raw('.size jobtab, %d' % (64*256))
    a.raw('''.section .rodata,"a"
.p2align 6
.amdhsa_kernel %s
  .amdhsa_next_free_vgpr 512
  .amdhsa_next_free_sgpr 102
  .amdhsa_accum_offset 256
  .amdhsa_group_segment_fixed_size 0
  .amdhsa_kernarg_size 56
  .amdhsa_user_sgpr_count 2
  .amdhsa_user_sgpr_kernarg_segment_ptr 1
  .amdhsa_system_sgpr_workgroup_id_x 1
  .amdhsa_float_denorm_mode_32 3
.end_amdhsa_kernel''' % KN)
    return '\n'.join(a.L) + '\n'

if __name__ == '__main__':
    out = sys.argv[1]
    for kv in sys.argv[2:]:
        k, v = kv.split('='); assert hasattr(P, k), k; setattr(P, k, int(v))
    txt = build()
    open(out, 'w').write(txt)
```

```python
import sys, math, struct

M, DM, DF = 2048, 640, 1728
XB, WB, OB = M*DM*2, DM*DF*2, M*DM*2
FLAG0 = 8 << 20
WSB = FLAG0 + 270*128
C1 = -2.0*math.sqrt(2.0/math.pi)*math.log2(math.e)
C2 = C1*0.044715
def f2u(x): return struct.unpack('<I', struct.pack('<f', x))[0]
KN = 'standalone__glu_gated_geglu__prompt_kernel'

class P:
    A = 4; SCHED = 1; PACE = 48; LOOK = 12; TOP = 10; PRO = 16; D = 4; PFCODE = 2; diag = 0
    LLAT = 900; CLAT = 1800; SLAT = 1100; ALAT = 1000
    PUBS = 0; POLLB = 9; HP = 3; SLEEP = 4
    DC = 12; PHIT = 72; PSLOW = 140; PAUSE = 800; XC = 1; XPRE = 3; DBGOUT = 0; SPF = 0; SPFAT = 0; PXC = 60; XPAUSE = 1300; PXR = 80; PDC = 200; LA = 12; EPACE = 100; LASTAT = 1; PREH = 8; MAP2 = 0
    STAMPS = 1

class Asm:
    def __init__(s):
        s.L = []; s.reset()
    def reset(s):
        s.vm = []; s.lg = []; s.nstamp = 0; s.t = 0; s.mf = -100; s.sm = None; s.issued = set()
    def __call__(s, t, c=4): s.L.append('    ' + t); s.t += c
    def label(s, t): s.L.append(t + ':')
    def raw(s, t): s.L.append(t)
    def mfma(s, d, a_, b, c):
        s.t = max(s.t, s.mf + 16); s.mf = s.t
        s('v_mfma_f32_16x16x32_bf16 %s, %s, %s, %s' % (d, a_, b, c), 8)
    def vmem(s, t, tag, lat, c=4):
        s(t, c); prev = s.vm[-1][1] if s.vm else 0
        s.vm.append((tag, max(prev, s.t + lat)))
    def lds(s, t, tag): s(t); s.lg.append(tag); s.issued.add(tag)
    def vm_ready(s, tag):
        r = 0
        for x, t in s.vm:
            if x == tag: r = t
        return r
    def wait(s, vm=None, lg=None):
        parts = []
        if vm is not None:
            if vm == 'all': n = 0 if s.vm else None
            else:
                tags = vm if isinstance(vm, list) else [vm]
                idx = max([i for i, x in enumerate(s.vm) if x[0] in tags], default=-1)
                n = None if idx < 0 else len(s.vm) - 1 - idx
            if n is not None:
                n = min(n, 63); parts.append('vmcnt(%d)' % n)
                s.t = max(s.t, s.vm[len(s.vm)-1-n][1])
                s.vm = s.vm[len(s.vm)-n:] if n else []
        if lg is not None:
            if lg == 'all': n = 0 if s.lg else None
            else:
                tags = lg if isinstance(lg, list) else [lg]
                idx = max([i for i, x in enumerate(s.lg) if x in tags], default=-1)
                n = None if idx < 0 else len(s.lg) - 1 - idx
            if n is not None:
                if s.sm is not None: n = 0; s.t = max(s.t, s.sm); s.sm = None
                n = min(n, 15); parts.append('lgkmcnt(%d)' % n); s.lg = s.lg[len(s.lg)-n:] if n else []
        if parts: s('s_waitcnt ' + ' '.join(parts))
    def stamp(s, name='', real=False, lvl=1):
        if not P.diag or lvl > P.STAMPS:
            s.raw('; mark %s est %d' % (name, s.t)); return
        s('%s s[98:99]' % ('s_memrealtime' if (real or (P.diag == 2 and name not in ('entry', 'end2'))) else 's_memtime'), 0); s('s_waitcnt lgkmcnt(0)', 0)
        s('v_writelane_b32 v255, s98, %d' % s.nstamp, 0)
        s.raw('; stamp %d %s est %d' % (s.nstamp, name, s.t)); s.nstamp += 1

def vr(b, n=4, p='v'): return '%s[%d:%d]' % (p, b, b+n-1)
def sr(b, n=4): return 's[%d:%d]' % (b, b+n-1)

S_X, S_WG, S_WU, S_WD, S_OUT, S_H, S_DBG = 20, 24, 28, 32, 36, 40, 44
S_WAVE, S_M0X, S_M0W, S_KW, S_T0, S_T1, S_HO, S_DO, S_HL, S_FV = 48, 49, 50, 51, 52, 53, 54, 55, 56, 57
S_RDY = 58; S_C = 62; S_TAB = 64; S_KX = 80; S_SPIN = 90; S_JO = 4
T_CLS, T_XO, T_ST, T_K0, T_HO, T_FL, T_DS, T_DR, T_U = [S_TAB+i for i in range(9)]
T_O0 = S_TAB+14; T_K1 = S_TAB+15
VGO, VZ = 8, 9
VXD = 10; VWD = 17; VDD = 19; XA = 23; WA = 29; DA = 32
VH, VHL, VHT, VPA, VPT, VPR, VRD, VO = 44, 45, 46, 47, 48, 49, 50, 51
XR = 52; RING = 6; ET = 100
def acc1(b): return 204 - 16*b
HB3 = [('a', 0), ('a', 56), ('v', 52)]; ACC2 = 112; OWN = 108; OQ = 132; RT = 8

class Lds:
    def __init__(s):
        s.free = list(range(10)); s.cur = None; s.fill = 4; s.live = {}; s.addr = {}
    def can(s, quad): return bool(s.free) if (quad or s.fill == 4) else True
    def alloc(s, key, quad):
        if quad:
            q = s.free.pop(0); s.live[q] = {key}; s.addr[key] = q*16384; return
        if s.fill == 4:
            s.cur = s.free.pop(0); s.fill = 0; s.live[s.cur] = {'open'}
        s.live[s.cur].add(key); s.addr[key] = s.cur*16384 + s.fill*4096; s.fill += 1
        if s.fill == 4: s.live[s.cur].discard('open')
    def close(s):
        if s.fill < 4:
            s.fill = 4; s.live[s.cur].discard('open'); s._chk(s.cur)
    def _chk(s, q):
        if not s.live[q]: del s.live[q]; s.free.append(q)
    def release(s, key):
        q = s.addr[key]//16384; s.live[q].discard(key); s._chk(q)

def setup_common(a):
    a.stamp('entry_rt', True, 0); a.stamp('entry', False, 0)
    a('s_cmp_ge_u32 s2, 256'); a('s_cbranch_scc1 L_end')
    a('s_load_dwordx8 s[4:11], s[0:1], 0')
    a('s_load_dwordx4 s[12:15], s[0:1], 32')
    a('s_load_dwordx2 s[16:17], s[0:1], 48')
    a('s_getpc_b64 s[18:19]'); a.label('L_pc')
    a('s_add_u32 s92, s18, jobtab-L_pc'); a('s_addc_u32 s93, s19, 0')
    a('s_lshl_b32 s3, s2, 6')
    a('s_load_dwordx16 %s, s[92:93], s3' % sr(S_TAB, 16))
    a('v_lshrrev_b32 v1, 6, v0'); a('v_lshlrev_b32 v%d, 7, v0' % VPR)
    a('v_and_b32 v0, 63, v0')
    a('v_readfirstlane_b32 s%d, v1' % S_WAVE)
    for b, sz in ((S_X, XB), (S_WG, WB), (S_WU, WB), (S_WD, WB), (S_OUT, OB), (S_H, WSB), (S_DBG, 256)):
        a('s_mov_b32 s%d, %d' % (b+2, sz)); a('s_mov_b32 s%d, 0x20000' % (b+3))
    a('s_lshl_b32 s%d, s%d, 10' % (S_M0X, S_WAVE))
    a('s_lshl_b32 s%d, s%d, 12' % (S_M0W, S_WAVE))
    a('s_mov_b32 s%d, 0x%08x' % (S_C, f2u(C2))); a('s_mov_b32 s%d, 0x%08x' % (S_C+1, f2u(C1)))
    l8, p8, m, g, r, c = 2, 3, 4, 5, 6, 7
    t0, t1 = ET, ET+1
    a('v_lshrrev_b32 v%d, 3, v0' % l8); a('v_and_b32 v%d, 7, v0' % p8)
    a('v_and_b32 v%d, 15, v0' % m); a('v_lshrrev_b32 v%d, 4, v0' % g)
    a('v_bfe_u32 v%d, v0, 2, 2' % r); a('v_and_b32 v%d, 3, v0' % c)
    a('v_mov_b32 v%d, 0' % VZ)
    a('s_lshl_b32 s%d, s%d, 3' % (S_T0, S_WAVE))
    a('v_add_u32 v%d, s%d, v%d' % (t0, S_T0, l8))
    a('v_bfe_u32 v%d, v%d, 1, 3' % (t1, t0))
    a('v_xor_b32 v%d, v%d, v%d' % (t1, t1, p8))
    a('v_mul_u32_u24 v%d, 1280, v%d' % (VXD, t0))
    a('v_lshl_add_u32 v%d, v%d, 4, v%d' % (VXD, t1, VXD))
    for b in range(1, 7): a('v_add_u32 v%d, %d, v%d' % (VXD+b, b*40960, VXD))
    a('v_mul_u32_u24 v%d, 3456, v%d' % (t0, t0))
    a('s_and_b32 s%d, s%d, 1' % (S_T0, S_WAVE)); a('s_lshl_b32 s%d, s%d, 2' % (S_T0, S_T0))
    a('v_and_b32 v%d, 2, v%d' % (t1, l8))
    a('v_xor_b32 v%d, v%d, v%d' % (t1, t1, p8))
    a('v_xor_b32 v%d, s%d, v%d' % (VWD, S_T0, t1))
    a('v_lshl_add_u32 v%d, v%d, 4, v%d' % (VWD, VWD, t0))
    a('v_add_u32 v%d, %d, v%d' % (VWD+1, 32*3456, VWD))
    a('s_mul_i32 s%d, s%d, 448' % (S_T0, S_WAVE))
    a('v_add_u32 v%d, s%d, v%d' % (t0, S_T0, l8))
    a('v_mul_u32_u24 v%d, 1280, v%d' % (t0, t0))
    a('v_lshl_add_u32 v%d, v%d, 4, v%d' % (VDD, t1, t0))
    a('v_xor_b32 v%d, 64, v%d' % (VDD+1, VDD))
    a('v_add_u32 v%d, %d, v%d' % (VDD+1, 8*1280, VDD+1))
    a('v_lshrrev_b32 v%d, 1, v%d' % (t0, m))
    a('v_xor_b32 v%d, v%d, v%d' % (t0, t0, g))
    a('v_lshlrev_b32 v%d, 4, v%d' % (t0, t0))
    a('v_lshl_add_u32 v%d, v%d, 7, v%d' % (XA, m, t0))
    a('v_xor_b32 v%d, 64, v%d' % (XA+1, XA))
    a('v_lshrrev_b32 v%d, 1, v%d' % (t0, r))
    a('v_and_b32 v%d, 1, v%d' % (t1, g))
    a('v_lshl_or_b32 v%d, v%d, 1, v%d' % (t0, t1, t0))
    a('v_xor_b32 v%d, s%d, v%d' % (t0, S_WAVE, t0))
    a('v_lshlrev_b32 v%d, 5, v%d' % (t0, t0))
    a('v_lshl_add_u32 v%d, v%d, 3, v%d' % (t0, c, t0))
    a('v_lshl_add_u32 v%d, v%d, 3, v%d' % (t1, g, r))
    a('v_lshl_add_u32 v%d, v%d, 7, v%d' % (WA, t1, t0))
    for w in (1, 2):
        a('v_add_u32 v%d, %d, v%d' % (XA+2*w, w*65536, XA)); a('v_add_u32 v%d, %d, v%d' % (XA+2*w+1, w*65536, XA+1))
        a('v_add_u32 v%d, %d, v%d' % (WA+w, w*65536, WA))
    a('v_add_u32 v%d, s%d, v%d' % (DA, S_M0W, WA))
    for d in range(1, 4): a('v_xor_b32 v%d, %d, v%d' % (DA+d, d*32, DA))
    for w in (1, 2):
        for d in range(4): a('v_add_u32 v%d, %d, v%d' % (DA+4*w+d, w*65536, DA+d))
    a('s_waitcnt lgkmcnt(0)')
    for b, src, off, sz in ((S_X, 4, T_XO, XB), (S_WG, 6, T_ST, WB), (S_WU, 8, T_ST, WB)):
        a('s_add_u32 s%d, s%d, s%d' % (b, src, off)); a('s_addc_u32 s%d, s%d, 0' % (b+1, src+1))
        a('s_sub_u32 s%d, %d, s%d' % (b+2, sz, off))
    a.stamp('ptrs')
    a('s_cmp_eq_u32 s%d, 1' % T_CLS); a('s_cbranch_scc1 L_cls1')
    a('s_cmp_eq_u32 s%d, 2' % T_CLS); a('s_cbranch_scc1 L_cls2')

def setup_ptrs(a):
    for b, src in ((S_WD, 10), (S_OUT, 12), (S_DBG, 14), (S_H, 16)):
        a('s_mov_b64 s[%d:%d], s[%d:%d]' % (b, b+1, src, src+1))

def setup_late(a, cls):
    l8, p8, m, g, r, c = 2, 3, 4, 5, 6, 7
    t0, t1, t2 = ET, ET+1, ET+2
    for q in range(2): a('v_add_u32 v%d, s%d, v%d' % (VDD+q, T_DS, VDD+q))
    for q in range(2): a('v_add_u32 v%d, %d, v%d' % (VDD+2+q, 16*1280, VDD+q))
    a('v_and_b32 v%d, 1, v%d' % (t0, g))
    a('v_mul_u32_u24 v%d, 55296, v%d' % (t0, t0))
    a('v_lshrrev_b32 v%d, 1, v%d' % (t1, g))
    a('v_lshl_add_u32 v%d, v%d, 8, v%d' % (t0, t1, t0))
    a('v_lshl_add_u32 v%d, v%d, 4, v%d' % (t0, m, t0))
    a('s_lshl_b32 s%d, s%d, 9' % (S_T0, S_WAVE)); a('s_add_u32 s%d, s%d, s%d' % (S_T0, S_T0, T_HO))
    a('v_add_u32 v%d, s%d, v%d' % (VH, S_T0, t0))
    a('s_mul_i32 s%d, s%d, 14336' % (S_T0, S_WAVE))
    a('v_lshlrev_b32 v%d, 4, v0' % t0)
    a('v_add_u32 v%d, s%d, v%d' % (VHL, S_T0, t0))
    a('v_add_u32 v%d, s%d, v%d' % (VRD, S_M0X, t0))
    a('s_cmp_eq_u32 s%d, 3' % S_WAVE)
    a('s_cselect_b32 s%d, 5, 6' % S_T1)
    a('s_movk_i32 s%d, 14336' % S_HL); a('s_cselect_b32 s%d, 12288, s%d' % (S_HL, S_HL))
    a('s_lshl_b32 s%d, s%d, 10' % (S_T0, T_DR))
    for j in range(14):
        a('s_cmp_ge_u32 s%d, s%d' % (S_T0, S_HL)); a('s_cselect_b32 s%d, 0x2000000, s%d' % (S_JO+j, S_T0))
        if j < 13:
            a('s_add_u32 s%d, s%d, 1024' % (S_T0, S_T0)); a('s_cmp_eq_u32 s%d, 14336' % S_T0); a('s_cselect_b32 s%d, 0, s%d' % (S_T0, S_T0))
    a('v_mul_u32_u24 v%d, 1280, v%d' % (t0, m))
    a('v_lshl_add_u32 v%d, v%d, 4, v%d' % (t0, t1, t0))
    a('s_lshl_b32 s%d, s%d, 5' % (S_T0, S_WAVE)); a('s_add_u32 s%d, s%d, s%d' % (S_T0, S_T0, T_DS))
    a('v_add_u32 v%d, s%d, v%d' % (VO, S_T0, t0))
    a('v_mov_b32 v%d, s%d' % (t0, T_U))
    for i in range(1, 6):
        a('v_cmp_eq_u32 vcc, %d, v%d' % (i, l8))
        a('v_mov_b32 v%d, s%d' % (t2, T_U+i)); a('s_nop 0')
        a('v_cndmask_b32 v%d, v%d, v%d, vcc' % (t0, t0, t2))
    a('v_lshrrev_b32 v%d, 1, v%d' % (t0, t0))
    a('v_mul_u32_u24 v%d, 37, v%d' % (t2, t0))
    a('v_lshrrev_b32 v%d, 8, v%d' % (t2, t2))
    a('v_mul_u32_u24 v%d, 7, v%d' % (VPT, t2))
    a('v_sub_u32 v%d, v%d, v%d' % (VPT, t0, VPT))
    a('v_mul_u32_u24 v%d, 27, v%d' % (t2, t2))
    a('v_min_u32 v%d, s%d, v%d' % (t0, S_T1, p8))
    a('s_mul_i32 s%d, s%d, 7' % (S_T0, S_WAVE))
    a('v_add3_u32 v%d, v%d, v%d, s%d' % (t0, t0, t2, S_T0))
    a('v_lshlrev_b32 v%d, 7, v%d' % (t0, t0))
    a('v_add_u32 v%d, %d, v%d' % (VPA, FLAG0, t0))
    a('s_add_u32 s%d, s%d, %d' % (T_FL, T_FL, FLAG0))
    a('s_lshl_b32 s%d, s%d, 2' % (S_T0, S_WAVE)); a('s_add_u32 s%d, s%d, s%d' % (T_FL, T_FL, S_T0))

XCOLD = [1, 6, 8]

def gen_class(a, cls):
    name = 'c%d' % cls
    nblk, nstrip, nun = ((7, 1, 5), (1, 2, 6), (1, 3, 5))[cls]
    A = P.A if cls == 0 else 1
    retain = A < nblk
    NPUB = nblk*nstrip
    lds = Lds()
    nacc = A*nstrip
    dd = [('a', 160+16*i, 0) for i in range(6)] + [('v', 220, 0), ('v', 236, 0)]
    if not retain: dd.append(('a', 144, 0))
    dd += [('v', acc1(b), 0) for b in range(NPUB, 5)] + [('v', acc1(b), b+1) for b in range(min(NPUB, 5))]
    if retain: dd.append(('a', 144, 99))
    assert len(dd) == 14
    def dreg(j, o, n): return vr(dd[j][1] + o, n, dd[j][0])
    stream = []
    for s in range(10):
        for st in range(nstrip):
            for ks in range(2):
                for mat in range(2): stream.append([('W', st, s, ks, mat), P.PACE, P.LLAT])
            if st == 0:
                for b in range(A): stream.append([('X', b, s), P.PACE, P.LLAT])
    nA = len(stream)
    Dt = [('D', j, q) for j in range(14) for q in range(4)]
    if retain:
        cold = XCOLD if P.XC else []
        for b in range(A, nblk):
            pass
        stream += [[('X', b, s), P.PXC, P.CLAT] for s in cold for b in range(A, nblk)]
        rest = [[('X', b, s), P.PXR, P.LLAT] for b in range(A, nblk) for s in range(10) if s not in cold]
        nb = P.XPRE*(10 - len(cold))
        rest[0][1] = P.XPAUSE
        stream += rest[:nb]
        stream += [[t, P.PDC, P.CLAT] for t in Dt[:P.DC]]
        l = rest[nb:] + [[t, -P.PHIT, P.LLAT] for t in Dt[P.DC:]]
        l[0][1] = P.PAUSE; stream += l
    else:
        for i, t in enumerate(Dt):
            stream.append([t, P.PACE if cls else P.PDC if i < P.DC else (P.PAUSE if i == P.DC else -P.PHIT), P.CLAT if i < P.DC else P.LLAT])
    tiles = [x[0] for x in stream]
    lastX = max(i for i, t in enumerate(tiles) if t[0] != 'D')
    dst = dict(next=0, avail=0, rel=[], relb=[])
    st8 = dict(pos=0, last=-10000, kw=None, armed=None, limit=0, kxn=0, slow=0, epi=False)
    def need_kx(s):
        while st8['kxn'] <= s:
            i = st8['kxn']
            a('s_bfe_u32 s%d, s%d, 0x%x' % (S_KX+i, T_K0 if i < 8 else T_K1, (4 << 16) | (4*(i % 8))))
            a('s_lshl_b32 s%d, s%d, 7' % (S_KX+i, S_KX+i))
            st8['kxn'] += 1
    def can_arm():
        if st8['armed'] or st8['pos'] >= min(len(stream), st8['limit']): return False
        t = tiles[st8['pos']]
        if st8['pos'] > lastX: lds.close()
        if t[0] == 'D':
            if t[2] != 0: return True
            return bool(dst['relb']) or len(lds.free) > 0
        return lds.can(False)
    def arm():
        t, _, lat = stream[st8['pos']]; st8['pos'] += 1
        if t[0] == 'W':
            _, st, s, ks, mat = t
            if st8['kw'] != (st, s):
                need_kx(s)
                a('s_mul_i32 s%d, s%d, 1728' % (S_KW, S_KX+s))
                if st: a('s_add_u32 s%d, s%d, %d' % (S_KW, S_KW, st*128))
                st8['kw'] = (st, s)
            lds.alloc(t, False)
            a('s_add_u32 m0, s%d, %d' % (S_M0X, lds.addr[t]))
            ins = 'buffer_load_dwordx4 v%d, %s, s%d offen lds' % (VWD+ks, sr(S_WU if mat else S_WG), S_KW)
        elif t[0] == 'X':
            _, b, s = t
            need_kx(s); lds.alloc(t, False)
            a('s_add_u32 m0, s%d, %d' % (S_M0X, lds.addr[t]))
            ins = 'buffer_load_dwordx4 v%d, %s, s%d offen lds' % (VXD+b, sr(S_X), S_KX+s)
        else:
            _, j, q = t
            if q == 0:
                if dst['relb']:
                    lds.release(('D', dst['relb'].pop(0))); lds.free.insert(0, lds.free.pop())
                lds.alloc(('D', j), True); a('s_mul_i32 s%d, s%d, 40' % (S_DO, S_JO+j))
            a('s_add_u32 m0, s%d, %d' % (S_M0W, lds.addr[('D', j)] + q*1024))
            ins = 'buffer_load_dwordx4 v%d, %s, s%d offen lds' % (VDD+q, sr(S_WD), S_DO)
        st8['armed'] = (ins, t, lat)
    fired = set()
    def fire():
        ins, t, lat = st8['armed']; st8['armed'] = None
        a.vmem(ins, t, lat, 30 if st8['epi'] else 4); st8['last'] = a.t; fired.add(t)
    def flush_armed():
        if st8['armed']: a('s_nop 0'); fire()
    def dma_now(n=1):
        flush_armed()
        for _ in range(n):
            assert can_arm(), (st8, lds.free, lds.live)
            arm(); a('s_nop 0'); fire()
    def pace():
        g = stream[st8['pos']][1]
        if g > 0: return g
        g = -g
        if a.t < st8['slow']: g = max(g, P.PSLOW)
        if st8['epi']: g = max(g, P.EPACE)
        return g
    rq = []; dq = []; nst = [0]
    def d_release():
        for j in list(dst['rel']):
            if ('dr', j) not in a.lg:
                dst['rel'].remove(j)
                if st8['pos'] > lastX: lds.release(('D', j))
                else: dst['relb'].append(j)
    def d_try(force=False):
        d_release()
        j = dst['next']
        if dq or j >= 14 or dd[j][2] > max(dst['avail'], nst[0]) or ('D', j, 3) not in fired: return
        if not force and a.vm_ready(('D', j, 3)) > a.t: return
        ad = lds.addr[('D', j)]; w = ad//65536
        dq.append(lambda: a.wait(vm=('D', j, 3)))
        for d in range(4):
            for t in range(2):
                def f(d=d, t=t):
                    a.lds('ds_read_b64_tr_b16 %s, v%d offset:%d' % (dreg(j, d*4 + t*2, 2), DA+4*w+d, ad - w*65536 + t*512), ('dr', j))
                    if d == 3 and t == 1: dst['rel'].append(j)
                dq.append(f)
        dst['next'] += 1
    pubs = [int(c) for c in str(P.PUBS)] if P.PUBS else sorted(set([2, A] + list(range(A, 8))))
    pub = dict(done=0, stores=[], tg=(pubs if cls == 0 else [nstrip]))
    def flag_atomic(val):
        a('s_mov_b32 s%d, %d' % (S_FV, val))
        for st in range(nstrip):
            a('s_atomic_umax s%d, s[%d:%d], s%d%s' % (S_FV, S_H, S_H+1, T_FL, ' offset:%d' % (128*st) if st else ''))
    def pub_try(force=False):
        if not pub['tg']: return False
        ok = [cnt for cnt in pub['stores'] if a.vm_ready(('hs', cnt)) <= a.t or force]
        if not ok or max(ok) < pub['tg'][0]: return False
        c = max(ok)
        a.wait(vm=('hs', c))
        if c == NPUB and (P.LASTAT or cls):
            if a.lg: a.wait(lg='all')
            flag_atomic(c if cls == 0 else 1); a.sm = a.t + P.ALAT
        else:
            a('v_mov_b32 v1, %d' % c)
            a.vmem('buffer_atomic_umax v1, v%d, %s, s%d offen sc1' % (VGO, sr(S_H), T_FL), 'flag', P.SLAT)
            st8['slow'] = max(st8['slow'], a.t + P.SLAT//2)
        pub['done'] = c; pub['stores'] = [x for x in pub['stores'] if x > c]
        pub['tg'] = [x for x in pub['tg'] if x > c]
        a.raw('; publish %d est %d' % (c, a.t))
        return True
    def gap(budget=2):
        n = 0
        if st8['armed']: fire(); n += 1
        while rq and n < budget and (n == 0 or len(rq) > 3): rq.pop(0)(); n += 1
        if n < budget and can_arm() and a.t - st8['last'] >= pace() - 20: arm(); n += 1
        if n == 0 and pub_try(): return
        if n < budget:
            d_try()
            if dq: dq.pop(0)(); n += 1
    phases = []
    for s in range(10):
        gs = []; wt = []
        for st in range(nstrip):
            if retain: wr = lambda mat, ks, s=s: (2*s+ks)*8 + mat*4
            else: wr = lambda mat, ks, st=st, s=s: ((s % 2)*nstrip + st)*16 + ks*8 + mat*4
            wt += [(('W', st, s, ks, mat), wr(mat, ks)) for mat in range(2) for ks in range(2)]
            for b in range(A):
                for h in range(2):
                    gs.append(dict(acc=acc1(st*A + b) + h*8, wr=wr, x=('X', b, s), h=h, first=(s == 0), w=(st, s), rev=False))
        phases.append(dict(g=gs, wt=wt, xt=[('X', b, s) for b in range(A)], epi=None))
    phases[-1]['epi'] = [(acc1(i), i*110592 if cls == 0 else i*2048) for i in range(nacc)]
    def bphase(bl, ss, first):
        gs = []
        for b in bl:
            for h in range(2):
                for i, s in enumerate(ss):
                    gs.append(dict(acc=acc1(b) + h*8, wr=(lambda mat, ks, s=s: (2*s+ks)*8 + mat*4), x=('X', b, s), h=h,
                                   first=(first and i == 0), w=None, rev=(i % 2 == 1)))
        phases.append(dict(g=gs, wt=[], xt=[('X', b, s) for b in bl for s in ss], epi=None))
    if retain:
        if cold: bphase(range(A, nblk), cold, True)
        for b in range(A, nblk):
            so = [s for s in range(10) if s not in cold]
            if cold: bphase([b], so, False)
            else: bphase([b], so[:5], True); bphase([b], so[5:], False)
            phases[-1]['epi'] = [(acc1(b), b*110592)]
    gi = 0
    for ph in phases:
        for g in ph['g']: g['id'] = gi; gi += 1
        ph['tiles'] = [t for t, _ in ph['wt']] + ph['xt']
        ph['end'] = max(tiles.index(t) for t in ph['tiles']) + 1
    def xread(g, ks):
        ad = lds.addr[g['x']] + g['h']*2048; w = ad//65536
        a.lds('ds_read_b128 %s, v%d offset:%d' % (vr(XR + (g['id'] % RING)*8 + ks*4), XA+2*w+ks, ad - w*65536), ('x', g['id'], ks))
    def wread(t, reg, tt):
        ad = lds.addr[t]; w = ad//65536
        a.lds('ds_read_b64_tr_b16 %s, v%d offset:%d' % (vr(reg + tt*2, 2, 'a'), WA+w, ad - w*65536 + tt*512), t + (tt,))
    def head_reads(ph, nx):
        q = []
        xs = [(g, ks) for g in ph['g'][:nx] for ks in range(2)]
        for i, (t, reg) in enumerate(ph['wt']):
            q += [lambda t=t, reg=reg: wread(t, reg, 0), lambda t=t, reg=reg: wread(t, reg, 1)]
            if i < 2 or i == 3:
                for _ in range(1 if i < 2 else 2):
                    if xs: g, ks = xs.pop(0); q.append(lambda g=g, ks=ks: xread(g, ks))
        q += [lambda g=g, ks=ks: xread(g, ks) for g, ks in xs]
        return q
    def barrier(vm_tags):
        flush_armed()
        a.wait(vm=list(vm_tags), lg='all')
        d_release()
        a('s_barrier')
        for j in dst['relb']: lds.release(('D', j))
        dst['relb'] = []
    slow = []
    def check_go():
        a.wait(vm='go')
        lab = 'L_go_%s' % name
        a('v_readfirstlane_b32 s%d, v%d' % (S_T0, VGO))
        a('v_lshlrev_b32 v%d, 24, v0' % VGO)
        a('s_cmp_eq_u32 s%d, 0' % S_T0); a('s_cbranch_scc1 %ss' % lab)
        a.label(lab)
        def emit():
            a.label(lab + 's')
            a('s_mov_b32 s%d, 0' % S_SPIN)
            a.label(lab + 'w')
            a('s_sleep 2')
            a('buffer_load_dword v1, v%d, %s, 0 offen sc1' % (VZ, sr(S_DBG)))
            a('s_waitcnt vmcnt(0)')
            a('v_readfirstlane_b32 s%d, v1' % S_T0)
            a('s_add_u32 s%d, s%d, 1' % (S_SPIN, S_SPIN)); a('s_cmp_gt_u32 s%d, 0x80000' % S_SPIN); a('s_cbranch_scc1 %s' % lab)
            a('s_cmp_eq_u32 s%d, 0' % S_T0); a('s_cbranch_scc1 %sw' % lab)
            a('s_branch %s' % lab)
        slow.append(emit)
    def epilogue(items, tailq):
        st8['epi'] = True
        a('s_nop 7' if len(items) == 1 else 's_nop 1')
        for n, (ab, hoff) in enumerate(items):
            T = ET
            G = [ab + h*8 + 2*p for h in range(2) for p in range(2)]
            def em(t, c=4): a(t, c); gap(1)
            for i in range(4): em('v_pk_mul_f32 %s, %s, %s' % (vr(T+2*i, 2), vr(G[i], 2), vr(G[i], 2)))
            for i in range(4): em('v_pk_fma_f32 %s, %s, s[%d:%d], s[%d:%d] op_sel:[0,0,1] op_sel_hi:[1,0,1]' % (vr(T+2*i, 2), vr(T+2*i, 2), S_C, S_C+1, S_C, S_C+1))
            for i in range(4): em('v_pk_mul_f32 %s, %s, %s' % (vr(T+2*i, 2), vr(T+2*i, 2), vr(G[i], 2)))
            for i in range(8): em('v_exp_f32 v%d, v%d' % (T+i, T+i), 8)
            for i in range(4): em('v_pk_add_f32 %s, %s, 1.0 op_sel_hi:[1,0]' % (vr(T+2*i, 2), vr(T+2*i, 2)))
            for i in range(8): em('v_rcp_f32 v%d, v%d' % (T+i, T+i), 8)
            if n == len(items)-1: rq.extend(tailq)
            for i in range(4): em('v_pk_mul_f32 %s, %s, %s' % (vr(T+2*i, 2), vr(T+2*i, 2), vr(G[i], 2)))
            for i in range(4): em('v_pk_mul_f32 %s, %s, %s' % (vr(T+2*i, 2), vr(T+2*i, 2), vr(G[i]+4, 2)))
            for i in range(4): em('v_cvt_pk_bf16_f32 v%d, v%d, v%d' % (ab+i, T+2*i, T+2*i+1))
            flush_armed()
            a('s_mov_b32 s%d, %d' % (S_HO, hoff)); a('s_nop 0')
            a('v_permlane16_swap_b32 v%d, v%d' % (ab, ab+2))
            a('v_permlane16_swap_b32 v%d, v%d' % (ab+1, ab+3))
            nst[0] += 1
            a.vmem('buffer_store_dwordx4 %s, v%d, %s, s%d offen sc1' % (vr(ab), VH, sr(S_H), S_HO), ('hs', nst[0]), P.SLAT, 20)
            pub['stores'].append(nst[0]); st8['slow'] = a.t + P.SLAT
        st8['epi'] = False
    PL = 'buffer_load_dwordx4 v[4:7], v%d, %s, 0 offen sc1' % (VPA, sr(S_H))
    def rdy_test(u): return ['s_bfe_u32 s%d, s%d, 0x%x' % (S_T0, S_RDY + u//4, (8 << 16) | ((u % 4)*8)), 's_cmp_eq_u32 s%d, 0xff' % S_T0]
    def poll_issue(u=None):
        if u is None:
            a('s_mov_b64 %s, 0' % sr(S_RDY, 2)); a.vmem(PL, 'poll', P.LLAT); return
        for t in rdy_test(u): a(t)
        a('s_cselect_b32 s%d, 0x40000000, 0' % S_T1)
        a.vmem('buffer_load_dwordx4 v[4:7], v%d, %s, s%d offen sc1' % (VPA, sr(S_H), S_T1), 'poll', P.LLAT)
    def poll_eval():
        a('v_min_u32 v4, v4, v5'); a('v_min3_u32 v4, v4, v6, v7')
        a('v_cmp_gt_u32 vcc, v4, v%d' % VPT); a('s_nop 0'); a('s_or_b64 %s, %s, vcc' % (sr(S_RDY, 2), sr(S_RDY, 2)))
    def need_unit(u):
        lab = 'L_nu_%s_%d' % (name, u)
        tst = rdy_test(u)
        for t in tst: a(t)
        a('s_cbranch_scc0 %ss' % lab)
        a.label(lab)
        pend = pub['done'] < NPUB
        assert nst[0] == NPUB
        def emit():
            a.label(lab + 's')
            a('s_mov_b32 s%d, 0' % S_SPIN)
            if pend:
                a('s_waitcnt vmcnt(0) lgkmcnt(0)'); flag_atomic(NPUB if cls == 0 else 1)
            a.label(lab + 'w')
            a('s_lshl_b64 exec, 0xff, %d' % (8*u)); a(PL); a('s_mov_b64 exec, -1'); a('s_waitcnt vmcnt(0) lgkmcnt(0)'); poll_eval()
            for t in tst: a(t)
            a('s_cbranch_scc1 %s' % lab)
            if P.SLEEP: a('s_sleep %d' % P.SLEEP)
            a('s_add_u32 s%d, s%d, 1' % (S_SPIN, S_SPIN)); a('s_cmp_gt_u32 s%d, 0x80000' % S_SPIN); a('s_cbranch_scc0 %sw' % lab)
            a('s_branch %s' % lab)
        slow.append(emit)
    def set_limit(i):
        if i+1 >= len(phases) or phases[i+1]['end'] + P.LOOK >= nA + (9 if retain else 0): st8['limit'] = len(stream); return
        st8['limit'] = phases[i+1]['end'] + P.LOOK
    def pfcode(nm):
        a('s_add_u32 s92, s18, L_code_%s-L_pc' % nm); a('s_addc_u32 s93, s19, 0')
        a('s_mov_b32 s94, L_codeend_%s-L_code_%s' % (nm, nm)); a('s_mov_b32 s95, 0x20000')
        a.vmem('buffer_load_dword v253, v%d, s[92:95], 0 offen' % VPR, 'pf', P.LLAT)

    if cls: a.label('L_cls%d' % cls)
    if cls == 2:
        setup_ptrs(a)
        for i in range(4): a('v_mov_b32 v%d, 0' % (108+i))
        a('s_mov_b32 s%d, %d' % (S_T0, FLAG0)); a('s_mov_b32 s%d, %d' % (S_T1, FLAG0 + 256*128))
        a.vmem('buffer_store_dwordx4 %s, v%d, %s, s%d offen sc1' % (vr(108), VPR, sr(S_H), S_T0), 'rst', P.SLAT)
        a.vmem('buffer_store_dwordx4 %s, v%d, %s, s%d offen sc1' % (vr(108), VPR, sr(S_H), S_T1), 'rst', P.SLAT)
    if P.PFCODE == 2 and cls: pfcode('c0')
    st8['limit'] = phases[0]['end']; dma_now(phases[0]['end'])
    if P.PFCODE == 1 or (P.PFCODE == 2 and cls): pfcode(name)
    a('s_barrier')
    st8['limit'] = len(stream)
    dma_now(max(0, min(12, P.PRO) - st8['pos']))
    if cls != 2: setup_ptrs(a)
    setup_late(a, cls)
    a.label('L_code_%s' % name)
    def spf():
        a('s_lshl_b32 s%d, s%d, 7' % (S_T0, S_WAVE))
        if retain and P.SPF & 1:
            nx = -(-(nblk-A)*320//(27*4))
            a('s_mul_i32 s%d, s%d, %d' % (S_T1, T_ST, nx*4)); a('s_add_u32 s%d, s%d, s%d' % (S_T1, S_T1, S_T0))
            for n in range(nx): a('s_buffer_load_dword s%d, %s, s%d offset:%d' % (S_SPIN, sr(S_X), S_T1, A*40960 + n*512))
        if P.SPF & 2:
            a('s_mul_i32 s%d, s2, 8704' % S_HO); a('s_add_u32 s%d, s%d, s%d' % (S_HO, S_HO, S_T0))
            for n in range(17): a('s_buffer_load_dword s%d, %s, s%d offset:%d' % (S_SPIN, sr(S_WD), S_HO, n*512))
        a.sm = 0
    if P.SPF and P.SPFAT == 0: spf()
    dma_now(max(0, max(P.PRO, phases[0]['end'] + 5) - st8['pos']))
    if P.SPF and P.SPFAT == 1: spf()
    barrier(phases[0]['tiles'] + ['rst'])
    if cls == 2:
        a('v_mov_b32 v1, 1'); a('s_mov_b64 exec, 1')
        a.vmem('buffer_store_dword v1, v%d, %s, s%d offen sc1' % (VZ, sr(S_DBG), S_M0X), 'gost', P.SLAT)
        a('s_mov_b64 exec, -1')
    a.stamp('ph0')
    a.t = 0; a.mf = -100; st8['last'] = -10000
    a.vm = [(x, 600) for x, _ in a.vm]
    D = P.D
    for f in head_reads(phases[0], D): f()
    nxt = D
    set_limit(0)
    for pi, ph in enumerate(phases):
        gs = ph['g']; ng = len(gs)
        nph = phases[pi+1] if pi+1 < len(phases) else None
        if pi == 4: a.vmem('buffer_load_dword v%d, v%d, %s, 0 offen sc1' % (VGO, VZ, sr(S_DBG)), 'go', P.LLAT)
        BU = max(ng - 4, 0)
        seen = set()
        for u, g in enumerate(gs):
            while nxt < ng and nxt <= u + D:
                rq.extend([lambda g2=gs[nxt]: xread(g2, 0), lambda g2=gs[nxt]: xread(g2, 1)]); nxt += 1
            xb = XR + (g['id'] % RING)*8
            order = ((1,0),(1,1),(0,0),(0,1)) if g['rev'] else ((0,0),(0,1),(1,0),(1,1))
            for i, (mat, ks) in enumerate(order):
                need = [('x', g['id'], ks)]
                if i == 0 and (not g['w'] or g['w'] in seen): need.append(('x', g['id'], 1))
                if g['w'] and g['w'] not in seen: need += [('W',) + g['w'] + (ks, mat, tt) for tt in range(2)]
                while any(n not in a.issued for n in need): rq.pop(0)()
                a.wait(lg=need)
                c = '0' if (g['first'] and ks == 0) else vr(g['acc'] + mat*4)
                a.mfma(vr(g['acc'] + mat*4), vr(g['wr'](mat, ks), 4, 'a'), vr(xb + ks*4), c)
                gap()
            if g['w']: seen.add(g['w'])
            late = ph['epi'] is not None and nph is not None
            if u == BU and not (late and pi == 9):
                while rq: rq.pop(0)()
                assert nxt == ng
                if nph:
                    flush_armed()
                    while st8['pos'] < nph['end']: dma_now()
                    while st8['pos'] < min(nph['end'] + P.TOP, nA if cls == 0 else 999) and can_arm(): dma_now()
                if pi == 8: check_go()
                barrier(nph['tiles'] if nph else [])
                for t in ph['tiles']: lds.release(t)
                set_limit(pi+1)
                a.stamp('b%d' % (pi+1), lvl=2)
                if nph and not late: rq.extend(head_reads(nph, 2))
        if ph['epi'] is not None:
            a.stamp('m%d' % pi)
            if nph is None and retain: dd[13] = dd[13][:2] + (0,)
            if pi == 9 and nph:
                barrier([])
                for t in ph['tiles']: lds.release(t)
                set_limit(pi+1)
                epilogue(ph['epi'][:-1], [])
                flush_armed()
                while st8['pos'] < nph['end']: dma_now()
                barrier(nph['tiles'])
                a('s_nop 0')
                epilogue(ph['epi'][-1:], head_reads(nph, D))
            else:
                if nph is None and cls == 0 and retain: poll_issue()
                epilogue(ph['epi'], head_reads(nph, D) if nph else [])
            while rq: rq.pop(0)()
            nxt = D
            a.stamp('e%d' % pi)
        else:
            nxt = 2
    dst['avail'] = 99
    flush_armed()
    a.raw('; D tiles left at P1 end: %d, next read group %d' % (len(stream) - st8['pos'], dst['next']))
    def hreg(u, j): p, b = HB3[u % 3]; return vr(b + 4*j, 4, p)
    hq = []
    for u in range(nun):
        def ctl(u=u):
            a.wait(vm='poll'); poll_eval(); need_unit(u)
            a('s_mul_i32 s%d, s%d, 55296' % (S_HL, T_U+u)); a('v_add_u32 v%d, s%d, v%d' % (VHT, S_HL, VHL))
            a.stamp('n%d' % u, lvl=2)
        hq.append((u, -1, ctl))
        for j in range(14):
            if j == 14 - P.POLLB and u < nun-1: hq.append((u, j, lambda u=u: poll_issue(u+1)))
            hq.append((u, j, lambda u=u, j=j: a.vmem('buffer_load_dwordx4 %s, v%d, %s, s%d offen sc1' % (hreg(u, j), VHT, sr(S_H), S_JO+j), ('h', u, j), P.LLAT)))
    prog = [0, 0, 4 + P.LA]
    def h_pop(n=1):
        for _ in range(n):
            if hq and (hq[0][0]-3, hq[0][1]) < (prog[0], prog[1]) and 14*hq[0][0] + hq[0][1] < prog[2]: hq.pop(0)[2]()
    polled = [cls == 0 and retain]
    def d_step():
        while dq: dq.pop(0)()
        if st8['pos'] >= len(stream): return False
        if not polled[0] and pub['done'] == NPUB and len(stream) - st8['pos'] <= P.POLLB: poll_issue(); polled[0] = True
        if can_arm(): dma_now(); return True
        d_try()
        if dq: return True
        if dst['rel']: a.wait(lg='all'); d_release(); return True
        d_try(True); assert dq
        return True
    k = 0
    while k < P.PREH:
        pub_try()
        n0 = len(a.vm)
        if not d_step():
            if not polled[0]: break
            h_pop()
        k += max(0, len(a.vm) - n0) if len(a.vm) != n0 else 0
        if not hq or 14*hq[0][0] + hq[0][1] >= prog[2]: break
    while True:
        d_try()
        if not dq: break
        while dq: dq.pop(0)()
    pub_try(True)
    assert pub['done'] == NPUB
    a.stamp('pub')
    while d_step(): pass
    if not polled[0]: poll_issue()
    a.stamp('dissued', lvl=2)
    while dst['next'] < 14 or dq:
        d_try()
        if not dq:
            if hq and 14*hq[0][0] + hq[0][1] < prog[2]: h_pop(); continue
            d_try(True)
        while dq: dq.pop(0)()
    a.wait(lg='all')
    a.stamp('dread')
    for d in range(1, 4): a('v_xor_b32 v%d, %d, v%d' % (DA+d, d*1024, VRD))
    for d in range(0, 4): a('v_add_u32 v%d, 65536, v%d' % (DA+4+d, DA+d if d else VRD))
    a('v_bfe_u32 v%d, v0, 4, 1' % (DA+8))
    def acc2(u, d): return vr(OWN + 4*u) if d == 0 else vr(ACC2 + (u % 2)*12 + (d-1)*4, 4, 'a')
    def red_write(u, d):
        off = (u*3 + d-1)*4096
        a.lds('ds_write_b128 v%d, %s offset:%d' % (DA + d + 4*(off//65536), acc2(u, d), off % 65536), ('rw', u))
    def red_items(u0, u1, q):
        us = [u0] + ([u1] if u1 is not None else [])
        it = []
        for n, u in enumerate(us):
            for d in range(1, 4):
                off = (u*3 + d-1)*4096
                it.append(lambda n=n, u=u, d=d, off=off: a.lds('ds_read_b128 %s, v%d offset:%d' % (vr(RT + 12*n + 4*(d-1)), VRD if off < 65536 else DA+4, off % 65536), ('rr', u)))
        S0, S1 = S_KW, S_DO
        it.append(lambda: a('s_mov_b32 s%d, s%d' % (S0, T_O0)) if u0 == 0 else a('s_mul_i32 s%d, s%d, 20480' % (S0, T_U+u0)))
        it.append(lambda: a('s_mul_i32 s%d, s%d, 20480' % (S1, T_U+u1)) if u1 is not None else a('s_mov_b32 s%d, 0x40000000' % S1))
        it.append(lambda: a('s_sub_u32 s%d, s%d, s%d' % (S1, S1, S0)))
        it.append(lambda: a('v_mul_lo_u32 v1, v%d, s%d' % (DA+8, S1)))
        it.append(lambda: a('v_add3_u32 v1, v1, v%d, s%d' % (VO, S0)))
        for n, u in enumerate(us):
            o = OWN + 4*u; r = RT + 12*n
            it.append(lambda u=u: a.wait(lg=('rr', u)))
            for i in range(4): it.append(lambda i=i, r=r: a('v_add_f32 v%d, v%d, v%d' % (r+i, r+i, r+4+i)))
            for i in range(4): it.append(lambda i=i, r=r, o=o: a('v_add_f32 v%d, v%d, v%d' % (o+i, o+i, r+8+i)))
            for i in range(4): it.append(lambda i=i, r=r, o=o: a('v_add_f32 v%d, v%d, v%d' % (o+i, o+i, r+i)))
            for p in range(2): it.append(lambda n=n, p=p, o=o: a('v_cvt_pk_bf16_f32 v%d, v%d, v%d' % (q + 2*n + p, o+2*p, o+2*p+1)))
        def fin():
            a('s_nop 1')
            a('v_permlane16_swap_b32 v%d, v%d' % (q, q+2))
            a('v_permlane16_swap_b32 v%d, v%d' % (q+1, q+3))
            a.vmem('buffer_store_dwordx4 %s, v1, %s, 0 offen' % (vr(q), sr(S_OUT)), 'o', 400)
        it.append(fin)
        return it
    wq = []; red = []
    CH = [(0, 4), (4, 7), (7, 11), (11, 14)]
    for u in range(nun):
        last = u == nun - 1
        for ci, (j0, j1) in enumerate(CH):
            prog[0], prog[1] = u, j0
            while hq and 14*hq[0][0] + hq[0][1] < 14*u + j1 + P.LA: h_pop()
            prog[2] = 14*u + j1 + P.LA + (CH[(ci+1) % 4][1] - CH[(ci+1) % 4][0])
            if u == 1 and ci == 0: a('s_barrier')
            if ci == 1 and u in (2, 4):
                assert not wq and not red
                a.wait(lg='all'); a('s_barrier')
                red = red_items(u-2, u-1, OQ + (u-2)*2)
            a.wait(vm=('h', u, j1-1))
            n = 0
            for d in ((1, 2, 3, 0) if (last and ci == 3) else (0, 1, 2, 3)):
                for j in range(j0, j1):
                    a.mfma(acc2(u, d), dreg(j, d*4, 4), hreg(u, j), '0' if j == 0 else acc2(u, d))
                    n += 1
                    if wq and n >= 9 and n % 2 == 0: wq.pop(0)()
                    elif n % P.HP == 1 and hq: h_pop()
                    else:
                        for _ in range(2):
                            if red: red.pop(0)()
        wq = [lambda u=u, d=d: red_write(u, d) for d in range(1, 4)]
        a.stamp('u%d' % u, lvl=(1 if last or u == 0 else 2))
    while red: red.pop(0)()
    wq.pop(0)(); a('s_nop 1'); wq.pop(0)(); a('s_nop 2'); wq.pop(0)()
    a.wait(lg='all'); a('s_barrier')
    for f in red_items(4, 5 if nun == 6 else None, OQ): f()
    a.stamp('end')
    if P.diag:
        a.wait(vm='all')
        a.stamp('end2', False, 0); a.stamp('end_rt', True, 0)
        a('s_getreg_b32 s98, hwreg(HW_REG_XCC_ID)'); a('v_writelane_b32 v255, s98, 63')
        a('v_writelane_b32 v255, s%d, 62' % T_CLS); a('v_writelane_b32 v255, s%d, 61' % T_K0)
        if P.DBGOUT:
            a('v_readlane_b32 s96, v255, 0'); a('v_readlane_b32 s97, v255, %d' % (a.nstamp-1)); a('s_nop 3')
            a('s_not_b32 s95, s96'); a('v_mov_b32 v2, s97'); a('v_mov_b32 v3, s95'); a('v_mov_b32 v1, 0')
            a('s_mov_b64 exec, 1')
            a('buffer_atomic_umax v2, v1, %s, 0 offen offset:4 sc1' % sr(S_DBG))
            a('buffer_atomic_umax v3, v1, %s, 0 offen offset:8 sc1' % sr(S_DBG))
            a('s_mov_b64 exec, -1')
            a('v_subrev_u32 v2, s96, v255'); a('v_lshlrev_b32 v3, 2, v0')
            a('s_lshl_b32 s95, s2, 2'); a('s_add_u32 s95, s95, s%d' % S_WAVE); a('s_cmp_eq_u32 s95, 404'); a('s_cselect_b32 s95, 4, 0x10000')
            a('s_mov_b64 exec, 0x7ffc')
            a('buffer_store_dword v2, v3, %s, s95 offen' % sr(S_DBG))
            a('s_mov_b64 exec, -1')
        a('s_mov_b32 s%d, 0x4000000' % (S_H+2))
        a('s_lshl_b32 s98, s2, 2'); a('s_add_u32 s98, s98, s%d' % S_WAVE); a('s_lshl_b32 s98, s98, 8')
        a('s_add_u32 s98, s98, %d' % (16 << 20))
        a('v_lshlrev_b32 v254, 2, v0')
        a('buffer_store_dword v255, v254, %s, s98 offen' % sr(S_H))
        a('s_waitcnt vmcnt(0)')
        a.raw('; nstamp %d cls %d' % (a.nstamp, cls))
        if P.diag == 2: a.raw('; realtime stamps')
    a('s_endpgm')
    for f in slow: f()
    a.label('L_codeend_%s' % name)

SCH = {1: [[0,2,1,3,6,4,5,7,8,9], [0,1,4,2,3,8,6,5,9,7], [1,3,0,2,7,5,4,6,8,9], [1,0,5,2,3,9,7,4,6,8]],
       5: [[0,1,2,3,4,5,6,7,8,9]]}
def jobs():
    nspec = [2, 2, 2, 1, 1, 2, 2, 1]
    tiles = [(s, g) for s in range(27) for g in range(9)]
    p1 = {x: [] for x in range(8)}; pos = 0
    for p in range(4):
        n0, n1 = 32 - nspec[2*p], 32 - nspec[2*p+1]
        mine = sorted(tiles[pos:pos+n0+n1], key=lambda t: (t[1], t[0])); pos += n0+n1
        p1[2*p] = [(0,) + t for t in mine[:n0]]; p1[2*p+1] = [(0,) + t for t in mine[n0:]]
    assert pos == 243
    st = 0
    for x in range(8):
        for i in range(nspec[x]):
            c = 2 if (x == 6 and i == 1) else 1
            p1[x].append((c, st, 9)); st += c+1
    assert st == 27
    nmat = [(7,6,7,6), (6,7,6,7), (7,6,6,7), (6,7,6,6), (6,6,7,6)]
    p2 = {}; drot = {}; dupc = set()
    def pos_of(u):
        b = u//2
        return (b % 7) if b < 63 else 3.5
    for half in range(2):
        xs = [2*q + half for q in range(4)]
        avail = {x: [i for i, j in enumerate(p1[x]) if j[0] != 1] for x in xs}
        s2 = [(x, i) for x in xs for i, j in enumerate(p1[x]) if j[0] == 1]
        assert len(s2) == 6, s2
        six = {3: s2[0::2], 4: s2[1::2]}
        for si in range(5):
            ds = 5*half + si
            cus = []
            for q, x in enumerate(xs):
                sp = [i for (xx, i) in six.get(si, []) if xx == x]
                l = [(x, i, 6) for i in sp]
                for _ in range(nmat[si][q] - len(sp)): l.append((x, avail[x].pop(), 5))
                cus.append(l)
            extra = sum(c[2] for l in cus for c in l) - 128
            assert extra in (0, 2)
            u0 = 0
            for q, l in enumerate(cus):
                n = sum(c[2] for c in l)
                dup = 1 if (extra and nmat[si][q] == 7) else 0
                us = list(range(u0, u0 + n - dup)); u0 += n - dup
                us.sort(key=lambda u: (pos_of(u), u))
                if dup: us.insert(0, us[0]); dupc.add((l[0][0], l[0][1]))
                asg = {c: [] for c in l}
                k = 0
                for c in l:
                    if c[2] == 6: asg[c].append(us[k]); k += 1
                for rd in range(5):
                    for c in l: asg[c].append(us[k]); k += 1
                for n_, c in enumerate(l):
                    p2[(c[0], c[1])] = (ds, asg[c]); drot[(c[0], c[1])] = ((n_ + si) % len(l))*14//len(l)
            assert u0 == 128
    recs = []
    sch = SCH[P.SCHED]
    if len(sch) > 1: assert set(o[i] for o in sch for i in XCOLD) == set(range(10))
    for wg in range(256):
        x, i = wg % 8, wg // 8
        c, s, g = p1[x][i]
        blk0 = g*7
        order = sch[(s + g) % len(sch)]
        assert sorted(order) == list(range(10))
        k0 = sum(order[i] << (4*i) for i in range(8)); k1 = order[8] | (order[9] << 4)
        ds, us = p2[(x, i)]
        us = us + [us[-1]]*(6-len(us))
        recs.append((c, blk0*40960, s*128, k0, blk0*110592 + s*2048, (g*27 + s)*128, ds*128, drot[(x, i)]) + tuple(us) + (0x40000000 if (x, i) in dupc else us[0]*20480, k1))
    cover = [(r[6], u) for r in recs for u in r[(9 if r[14] == 0x40000000 else 8):8+(6 if r[0] == 1 else 5)]]
    assert len(cover) == 1280 and len(set(cover)) == 1280
    return recs

def build():
    a = Asm()
    hdr = open('standalone__glu_gated_geglu__prompt.s.ref').read().split('\n')[:8]
    for l in hdr: a.raw(l)
    a.raw('; @launch grid=(256,1,1) block=(256,1,1) lds=163840')
    a.raw('.amdgcn_target "amdgcn-amd-amdhsa--gfx950"'); a.raw('.text')
    a.raw('.globl %s\n.p2align 8\n.type %s,@function' % (KN, KN)); a.label(KN)
    setup_common(a)
    ns = a.nstamp
    for cls in range(3):
        a.reset(); a.nstamp = ns
        gen_class(a, cls)
    a.label('L_end'); a('s_endpgm')
    a.raw('.p2align 6'); a.raw('.type jobtab,@object'); a.label('jobtab')
    for r in jobs(): a.raw('.long ' + ', '.join(str(int(x)) for x in r))
    a.raw('.size jobtab, %d' % (64*256))
    a.raw('''.section .rodata,"a"
.p2align 6
.amdhsa_kernel %s
  .amdhsa_next_free_vgpr 512
  .amdhsa_next_free_sgpr 102
  .amdhsa_accum_offset 256
  .amdhsa_group_segment_fixed_size 0
  .amdhsa_kernarg_size 56
  .amdhsa_user_sgpr_count 2
  .amdhsa_user_sgpr_kernarg_segment_ptr 1
  .amdhsa_system_sgpr_workgroup_id_x 1
  .amdhsa_float_denorm_mode_32 3
.end_amdhsa_kernel''' % KN)
    return '\n'.join(a.L) + '\n'

if __name__ == '__main__':
    out = sys.argv[1]
    for kv in sys.argv[2:]:
        k, v = kv.split('='); assert hasattr(P, k), k; setattr(P, k, int(v))
    txt = build()
    open(out, 'w').write(txt)
```

```python
import sys, math, struct

M, DM, DF = 2048, 640, 1728
XB, WB, OB = M*DM*2, DM*DF*2, M*DM*2
FLAG0 = 8 << 20
WSB = FLAG0 + 270*128
C1 = -2.0*math.sqrt(2.0/math.pi)*math.log2(math.e)
C2 = C1*0.044715
def f2u(x): return struct.unpack('<I', struct.pack('<f', x))[0]
KN = 'standalone__glu_gated_geglu__prompt_kernel'

class P:
    A = 4; SCHED = 1; PACE = 48; LOOK = 12; TOP = 10; PRO = 16; D = 4; PFCODE = 2; diag = 0
    LLAT = 900; CLAT = 1800; SLAT = 1100; ALAT = 1000
    PUBS = 0; POLLB = 9; HP = 3; SLEEP = 4
    DC = 12; PHIT = 72; PSLOW = 140; PAUSE = 800; XC = 1; XPRE = 3; OPOL = 0; TOUCH = 0; DBGOUT = 0; SPF = 0; SPFAT = 0; PXC = 60; XPAUSE = 1300; PXR = 80; PDC = 200; LA = 12; EPACE = 100; LASTAT = 1; PREH = 8; MAP2 = 0
    STAMPS = 1

class Asm:
    def __init__(s):
        s.L = []; s.reset()
    def reset(s):
        s.vm = []; s.lg = []; s.nstamp = 0; s.t = 0; s.mf = -100; s.sm = None; s.issued = set()
    def __call__(s, t, c=4): s.L.append('    ' + t); s.t += c
    def label(s, t): s.L.append(t + ':')
    def raw(s, t): s.L.append(t)
    def mfma(s, d, a_, b, c):
        s.t = max(s.t, s.mf + 16); s.mf = s.t
        s('v_mfma_f32_16x16x32_bf16 %s, %s, %s, %s' % (d, a_, b, c), 8)
    def vmem(s, t, tag, lat, c=4):
        s(t, c); prev = s.vm[-1][1] if s.vm else 0
        s.vm.append((tag, max(prev, s.t + lat)))
    def lds(s, t, tag): s(t); s.lg.append(tag); s.issued.add(tag)
    def vm_ready(s, tag):
        r = 0
        for x, t in s.vm:
            if x == tag: r = t
        return r
    def wait(s, vm=None, lg=None):
        parts = []
        if vm is not None:
            if vm == 'all': n = 0 if s.vm else None
            else:
                tags = vm if isinstance(vm, list) else [vm]
                idx = max([i for i, x in enumerate(s.vm) if x[0] in tags], default=-1)
                n = None if idx < 0 else len(s.vm) - 1 - idx
            if n is not None:
                n = min(n, 63); parts.append('vmcnt(%d)' % n)
                s.t = max(s.t, s.vm[len(s.vm)-1-n][1])
                s.vm = s.vm[len(s.vm)-n:] if n else []
        if lg is not None:
            if lg == 'all': n = 0 if s.lg else None
            else:
                tags = lg if isinstance(lg, list) else [lg]
                idx = max([i for i, x in enumerate(s.lg) if x in tags], default=-1)
                n = None if idx < 0 else len(s.lg) - 1 - idx
            if n is not None:
                if s.sm is not None: n = 0; s.t = max(s.t, s.sm); s.sm = None
                n = min(n, 15); parts.append('lgkmcnt(%d)' % n); s.lg = s.lg[len(s.lg)-n:] if n else []
        if parts: s('s_waitcnt ' + ' '.join(parts))
    def stamp(s, name='', real=False, lvl=1):
        if not P.diag or lvl > P.STAMPS:
            s.raw('; mark %s est %d' % (name, s.t)); return
        s('%s s[98:99]' % ('s_memrealtime' if (real or (P.diag == 2 and name not in ('entry', 'end2'))) else 's_memtime'), 0); s('s_waitcnt lgkmcnt(0)', 0)
        s('v_writelane_b32 v255, s98, %d' % s.nstamp, 0)
        s.raw('; stamp %d %s est %d' % (s.nstamp, name, s.t)); s.nstamp += 1

def vr(b, n=4, p='v'): return '%s[%d:%d]' % (p, b, b+n-1)
def sr(b, n=4): return 's[%d:%d]' % (b, b+n-1)

S_X, S_WG, S_WU, S_WD, S_OUT, S_H, S_DBG = 20, 24, 28, 32, 36, 40, 44
S_WAVE, S_M0X, S_M0W, S_KW, S_T0, S_T1, S_HO, S_DO, S_HL, S_FV = 48, 49, 50, 51, 52, 53, 54, 55, 56, 57
S_RDY = 58; S_C = 62; S_TAB = 64; S_KX = 80; S_SPIN = 90; S_JO = 4
T_CLS, T_XO, T_ST, T_K0, T_HO, T_FL, T_DS, T_DR, T_U = [S_TAB+i for i in range(9)]
T_O0 = S_TAB+14; T_K1 = S_TAB+15
VGO, VZ = 8, 9
VXD = 10; VWD = 17; VDD = 19; XA = 23; WA = 29; DA = 32
VH, VHL, VHT, VPA, VPT, VPR, VRD, VO = 44, 45, 46, 47, 48, 49, 50, 51
XR = 52; RING = 6; ET = 100
def acc1(b): return 204 - 16*b
HB3 = [('a', 0), ('a', 56), ('v', 52)]; ACC2 = 112; OWN = 108; OQ = 132; RT = 8

class Lds:
    def __init__(s):
        s.free = list(range(10)); s.cur = None; s.fill = 4; s.live = {}; s.addr = {}
    def can(s, quad): return bool(s.free) if (quad or s.fill == 4) else True
    def alloc(s, key, quad):
        if quad:
            q = s.free.pop(0); s.live[q] = {key}; s.addr[key] = q*16384; return
        if s.fill == 4:
            s.cur = s.free.pop(0); s.fill = 0; s.live[s.cur] = {'open'}
        s.live[s.cur].add(key); s.addr[key] = s.cur*16384 + s.fill*4096; s.fill += 1
        if s.fill == 4: s.live[s.cur].discard('open')
    def close(s):
        if s.fill < 4:
            s.fill = 4; s.live[s.cur].discard('open'); s._chk(s.cur)
    def _chk(s, q):
        if not s.live[q]: del s.live[q]; s.free.append(q)
    def release(s, key):
        q = s.addr[key]//16384; s.live[q].discard(key); s._chk(q)

def setup_common(a):
    a.stamp('entry_rt', True, 0); a.stamp('entry', False, 0)
    a('s_cmp_ge_u32 s2, 256'); a('s_cbranch_scc1 L_end')
    a('s_load_dwordx8 s[4:11], s[0:1], 0')
    a('s_load_dwordx4 s[12:15], s[0:1], 32')
    a('s_load_dwordx2 s[16:17], s[0:1], 48')
    a('s_getpc_b64 s[18:19]'); a.label('L_pc')
    a('s_add_u32 s92, s18, jobtab-L_pc'); a('s_addc_u32 s93, s19, 0')
    a('s_lshl_b32 s3, s2, 6')
    a('s_load_dwordx16 %s, s[92:93], s3' % sr(S_TAB, 16))
    a('v_lshrrev_b32 v1, 6, v0'); a('v_lshlrev_b32 v%d, 7, v0' % VPR)
    a('v_and_b32 v0, 63, v0')
    a('v_readfirstlane_b32 s%d, v1' % S_WAVE)
    for b, sz in ((S_X, XB), (S_WG, WB), (S_WU, WB), (S_WD, WB), (S_OUT, OB), (S_H, WSB), (S_DBG, 256)):
        a('s_mov_b32 s%d, %d' % (b+2, sz)); a('s_mov_b32 s%d, 0x20000' % (b+3))
    a('s_lshl_b32 s%d, s%d, 10' % (S_M0X, S_WAVE))
    a('s_lshl_b32 s%d, s%d, 12' % (S_M0W, S_WAVE))
    a('s_mov_b32 s%d, 0x%08x' % (S_C, f2u(C2))); a('s_mov_b32 s%d, 0x%08x' % (S_C+1, f2u(C1)))
    l8, p8, m, g, r, c = 2, 3, 4, 5, 6, 7
    t0, t1 = ET, ET+1
    a('v_lshrrev_b32 v%d, 3, v0' % l8); a('v_and_b32 v%d, 7, v0' % p8)
    a('v_and_b32 v%d, 15, v0' % m); a('v_lshrrev_b32 v%d, 4, v0' % g)
    a('v_bfe_u32 v%d, v0, 2, 2' % r); a('v_and_b32 v%d, 3, v0' % c)
    a('v_mov_b32 v%d, 0' % VZ)
    a('s_lshl_b32 s%d, s%d, 3' % (S_T0, S_WAVE))
    a('v_add_u32 v%d, s%d, v%d' % (t0, S_T0, l8))
    a('v_bfe_u32 v%d, v%d, 1, 3' % (t1, t0))
    a('v_xor_b32 v%d, v%d, v%d' % (t1, t1, p8))
    a('v_mul_u32_u24 v%d, 1280, v%d' % (VXD, t0))
    a('v_lshl_add_u32 v%d, v%d, 4, v%d' % (VXD, t1, VXD))
    for b in range(1, 7): a('v_add_u32 v%d, %d, v%d' % (VXD+b, b*40960, VXD))
    a('v_mul_u32_u24 v%d, 3456, v%d' % (t0, t0))
    a('s_and_b32 s%d, s%d, 1' % (S_T0, S_WAVE)); a('s_lshl_b32 s%d, s%d, 2' % (S_T0, S_T0))
    a('v_and_b32 v%d, 2, v%d' % (t1, l8))
    a('v_xor_b32 v%d, v%d, v%d' % (t1, t1, p8))
    a('v_xor_b32 v%d, s%d, v%d' % (VWD, S_T0, t1))
    a('v_lshl_add_u32 v%d, v%d, 4, v%d' % (VWD, VWD, t0))
    a('v_add_u32 v%d, %d, v%d' % (VWD+1, 32*3456, VWD))
    a('s_mul_i32 s%d, s%d, 448' % (S_T0, S_WAVE))
    a('v_add_u32 v%d, s%d, v%d' % (t0, S_T0, l8))
    a('v_mul_u32_u24 v%d, 1280, v%d' % (t0, t0))
    a('v_lshl_add_u32 v%d, v%d, 4, v%d' % (VDD, t1, t0))
    a('v_xor_b32 v%d, 64, v%d' % (VDD+1, VDD))
    a('v_add_u32 v%d, %d, v%d' % (VDD+1, 8*1280, VDD+1))
    a('v_lshrrev_b32 v%d, 1, v%d' % (t0, m))
    a('v_xor_b32 v%d, v%d, v%d' % (t0, t0, g))
    a('v_lshlrev_b32 v%d, 4, v%d' % (t0, t0))
    a('v_lshl_add_u32 v%d, v%d, 7, v%d' % (XA, m, t0))
    a('v_xor_b32 v%d, 64, v%d' % (XA+1, XA))
    a('v_lshrrev_b32 v%d, 1, v%d' % (t0, r))
    a('v_and_b32 v%d, 1, v%d' % (t1, g))
    a('v_lshl_or_b32 v%d, v%d, 1, v%d' % (t0, t1, t0))
    a('v_xor_b32 v%d, s%d, v%d' % (t0, S_WAVE, t0))
    a('v_lshlrev_b32 v%d, 5, v%d' % (t0, t0))
    a('v_lshl_add_u32 v%d, v%d, 3, v%d' % (t0, c, t0))
    a('v_lshl_add_u32 v%d, v%d, 3, v%d' % (t1, g, r))
    a('v_lshl_add_u32 v%d, v%d, 7, v%d' % (WA, t1, t0))
    for w in (1, 2):
        a('v_add_u32 v%d, %d, v%d' % (XA+2*w, w*65536, XA)); a('v_add_u32 v%d, %d, v%d' % (XA+2*w+1, w*65536, XA+1))
        a('v_add_u32 v%d, %d, v%d' % (WA+w, w*65536, WA))
    a('v_add_u32 v%d, s%d, v%d' % (DA, S_M0W, WA))
    for d in range(1, 4): a('v_xor_b32 v%d, %d, v%d' % (DA+d, d*32, DA))
    for w in (1, 2):
        for d in range(4): a('v_add_u32 v%d, %d, v%d' % (DA+4*w+d, w*65536, DA+d))
    a('s_waitcnt lgkmcnt(0)')
    for b, src, off, sz in ((S_X, 4, T_XO, XB), (S_WG, 6, T_ST, WB), (S_WU, 8, T_ST, WB)):
        a('s_add_u32 s%d, s%d, s%d' % (b, src, off)); a('s_addc_u32 s%d, s%d, 0' % (b+1, src+1))
        a('s_sub_u32 s%d, %d, s%d' % (b+2, sz, off))
    a.stamp('ptrs')
    a('s_cmp_eq_u32 s%d, 1' % T_CLS); a('s_cbranch_scc1 L_cls1')
    a('s_cmp_eq_u32 s%d, 2' % T_CLS); a('s_cbranch_scc1 L_cls2')

def setup_ptrs(a):
    for b, src in ((S_WD, 10), (S_OUT, 12), (S_DBG, 14), (S_H, 16)):
        a('s_mov_b64 s[%d:%d], s[%d:%d]' % (b, b+1, src, src+1))

def setup_late(a, cls):
    l8, p8, m, g, r, c = 2, 3, 4, 5, 6, 7
    t0, t1, t2 = ET, ET+1, ET+2
    for q in range(2): a('v_add_u32 v%d, s%d, v%d' % (VDD+q, T_DS, VDD+q))
    for q in range(2): a('v_add_u32 v%d, %d, v%d' % (VDD+2+q, 16*1280, VDD+q))
    a('v_and_b32 v%d, 1, v%d' % (t0, g))
    a('v_mul_u32_u24 v%d, 55296, v%d' % (t0, t0))
    a('v_lshrrev_b32 v%d, 1, v%d' % (t1, g))
    a('v_lshl_add_u32 v%d, v%d, 8, v%d' % (t0, t1, t0))
    a('v_lshl_add_u32 v%d, v%d, 4, v%d' % (t0, m, t0))
    a('s_lshl_b32 s%d, s%d, 9' % (S_T0, S_WAVE)); a('s_add_u32 s%d, s%d, s%d' % (S_T0, S_T0, T_HO))
    a('v_add_u32 v%d, s%d, v%d' % (VH, S_T0, t0))
    a('s_mul_i32 s%d, s%d, 14336' % (S_T0, S_WAVE))
    a('v_lshlrev_b32 v%d, 4, v0' % t0)
    a('v_add_u32 v%d, s%d, v%d' % (VHL, S_T0, t0))
    a('v_add_u32 v%d, s%d, v%d' % (VRD, S_M0X, t0))
    a('s_cmp_eq_u32 s%d, 3' % S_WAVE)
    a('s_cselect_b32 s%d, 5, 6' % S_T1)
    a('s_movk_i32 s%d, 14336' % S_HL); a('s_cselect_b32 s%d, 12288, s%d' % (S_HL, S_HL))
    a('s_lshl_b32 s%d, s%d, 10' % (S_T0, T_DR))
    for j in range(14):
        a('s_cmp_ge_u32 s%d, s%d' % (S_T0, S_HL)); a('s_cselect_b32 s%d, 0x2000000, s%d' % (S_JO+j, S_T0))
        if j < 13:
            a('s_add_u32 s%d, s%d, 1024' % (S_T0, S_T0)); a('s_cmp_eq_u32 s%d, 14336' % S_T0); a('s_cselect_b32 s%d, 0, s%d' % (S_T0, S_T0))
    a('v_mul_u32_u24 v%d, 1280, v%d' % (t0, m))
    a('v_lshl_add_u32 v%d, v%d, 4, v%d' % (t0, t1, t0))
    a('s_lshl_b32 s%d, s%d, 5' % (S_T0, S_WAVE)); a('s_add_u32 s%d, s%d, s%d' % (S_T0, S_T0, T_DS))
    a('v_add_u32 v%d, s%d, v%d' % (VO, S_T0, t0))
    a('v_mov_b32 v%d, s%d' % (t0, T_U))
    for i in range(1, 6):
        a('v_cmp_eq_u32 vcc, %d, v%d' % (i, l8))
        a('v_mov_b32 v%d, s%d' % (t2, T_U+i)); a('s_nop 0')
        a('v_cndmask_b32 v%d, v%d, v%d, vcc' % (t0, t0, t2))
    a('v_lshrrev_b32 v%d, 1, v%d' % (t0, t0))
    a('v_mul_u32_u24 v%d, 37, v%d' % (t2, t0))
    a('v_lshrrev_b32 v%d, 8, v%d' % (t2, t2))
    a('v_mul_u32_u24 v%d, 7, v%d' % (VPT, t2))
    a('v_sub_u32 v%d, v%d, v%d' % (VPT, t0, VPT))
    a('v_mul_u32_u24 v%d, 27, v%d' % (t2, t2))
    a('v_min_u32 v%d, s%d, v%d' % (t0, S_T1, p8))
    a('s_mul_i32 s%d, s%d, 7' % (S_T0, S_WAVE))
    a('v_add3_u32 v%d, v%d, v%d, s%d' % (t0, t0, t2, S_T0))
    a('v_lshlrev_b32 v%d, 7, v%d' % (t0, t0))
    a('v_add_u32 v%d, %d, v%d' % (VPA, FLAG0, t0))
    a('s_add_u32 s%d, s%d, %d' % (T_FL, T_FL, FLAG0))
    a('s_lshl_b32 s%d, s%d, 2' % (S_T0, S_WAVE)); a('s_add_u32 s%d, s%d, s%d' % (T_FL, T_FL, S_T0))

XCOLD = [1, 6, 8]

def gen_class(a, cls):
    name = 'c%d' % cls
    nblk, nstrip, nun = ((7, 1, 5), (1, 2, 6), (1, 3, 5))[cls]
    A = P.A if cls == 0 else 1
    retain = A < nblk
    NPUB = nblk*nstrip
    lds = Lds()
    nacc = A*nstrip
    dd = [('a', 160+16*i, 0) for i in range(6)] + [('v', 220, 0), ('v', 236, 0)]
    if not retain: dd.append(('a', 144, 0))
    dd += [('v', acc1(b), 0) for b in range(NPUB, 5)] + [('v', acc1(b), b+1) for b in range(min(NPUB, 5))]
    if retain: dd.append(('a', 144, 99))
    assert len(dd) == 14
    def dreg(j, o, n): return vr(dd[j][1] + o, n, dd[j][0])
    stream = []
    for s in range(10):
        for st in range(nstrip):
            for ks in range(2):
                for mat in range(2): stream.append([('W', st, s, ks, mat), P.PACE, P.LLAT])
            if st == 0:
                for b in range(A): stream.append([('X', b, s), P.PACE, P.LLAT])
    nA = len(stream)
    Dt = [('D', j, q) for j in range(14) for q in range(4)]
    if retain:
        cold = XCOLD if P.XC else []
        for b in range(A, nblk):
            pass
        stream += [[('X', b, s), P.PXC, P.CLAT] for s in cold for b in range(A, nblk)]
        rest = [[('X', b, s), P.PXR, P.LLAT] for b in range(A, nblk) for s in range(10) if s not in cold]
        nb = P.XPRE*(10 - len(cold))
        rest[0][1] = P.XPAUSE
        stream += rest[:nb]
        stream += [[t, P.PDC, P.CLAT] for t in Dt[:P.DC]]
        l = rest[nb:] + [[t, -P.PHIT, P.LLAT] for t in Dt[P.DC:]]
        l[0][1] = P.PAUSE; stream += l
    else:
        for i, t in enumerate(Dt):
            stream.append([t, P.PACE if cls else P.PDC if i < P.DC else (P.PAUSE if i == P.DC else -P.PHIT), P.CLAT if i < P.DC else P.LLAT])
    tiles = [x[0] for x in stream]
    lastX = max(i for i, t in enumerate(tiles) if t[0] != 'D')
    dst = dict(next=0, avail=0, rel=[], relb=[])
    st8 = dict(pos=0, last=-10000, kw=None, armed=None, limit=0, kxn=0, slow=0, epi=False)
    def need_kx(s):
        while st8['kxn'] <= s:
            i = st8['kxn']
            a('s_bfe_u32 s%d, s%d, 0x%x' % (S_KX+i, T_K0 if i < 8 else T_K1, (4 << 16) | (4*(i % 8))))
            a('s_lshl_b32 s%d, s%d, 7' % (S_KX+i, S_KX+i))
            st8['kxn'] += 1
    def can_arm():
        if st8['armed'] or st8['pos'] >= min(len(stream), st8['limit']): return False
        t = tiles[st8['pos']]
        if st8['pos'] > lastX: lds.close()
        if t[0] == 'D':
            if t[2] != 0: return True
            return bool(dst['relb']) or len(lds.free) > 0
        return lds.can(False)
    def arm():
        t, _, lat = stream[st8['pos']]; st8['pos'] += 1
        if t[0] == 'W':
            _, st, s, ks, mat = t
            if st8['kw'] != (st, s):
                need_kx(s)
                a('s_mul_i32 s%d, s%d, 1728' % (S_KW, S_KX+s))
                if st: a('s_add_u32 s%d, s%d, %d' % (S_KW, S_KW, st*128))
                st8['kw'] = (st, s)
            lds.alloc(t, False)
            a('s_add_u32 m0, s%d, %d' % (S_M0X, lds.addr[t]))
            ins = 'buffer_load_dwordx4 v%d, %s, s%d offen lds' % (VWD+ks, sr(S_WU if mat else S_WG), S_KW)
        elif t[0] == 'X':
            _, b, s = t
            need_kx(s); lds.alloc(t, False)
            a('s_add_u32 m0, s%d, %d' % (S_M0X, lds.addr[t]))
            ins = 'buffer_load_dwordx4 v%d, %s, s%d offen lds' % (VXD+b, sr(S_X), S_KX+s)
        else:
            _, j, q = t
            if q == 0:
                if dst['relb']:
                    lds.release(('D', dst['relb'].pop(0))); lds.free.insert(0, lds.free.pop())
                lds.alloc(('D', j), True); a('s_mul_i32 s%d, s%d, 40' % (S_DO, S_JO+j))
            a('s_add_u32 m0, s%d, %d' % (S_M0W, lds.addr[('D', j)] + q*1024))
            ins = 'buffer_load_dwordx4 v%d, %s, s%d offen lds' % (VDD+q, sr(S_WD), S_DO)
        st8['armed'] = (ins, t, lat)
    fired = set()
    def fire():
        ins, t, lat = st8['armed']; st8['armed'] = None
        a.vmem(ins, t, lat, 30 if st8['epi'] else 4); st8['last'] = a.t; fired.add(t)
    def flush_armed():
        if st8['armed']: a('s_nop 0'); fire()
    def dma_now(n=1):
        flush_armed()
        for _ in range(n):
            assert can_arm(), (st8, lds.free, lds.live)
            arm(); a('s_nop 0'); fire()
    def pace():
        g = stream[st8['pos']][1]
        if g > 0: return g
        g = -g
        if a.t < st8['slow']: g = max(g, P.PSLOW)
        if st8['epi']: g = max(g, P.EPACE)
        return g
    rq = []; dq = []; nst = [0]
    def d_release():
        for j in list(dst['rel']):
            if ('dr', j) not in a.lg:
                dst['rel'].remove(j)
                if st8['pos'] > lastX: lds.release(('D', j))
                else: dst['relb'].append(j)
    def d_try(force=False):
        d_release()
        j = dst['next']
        if dq or j >= 14 or dd[j][2] > max(dst['avail'], nst[0]) or ('D', j, 3) not in fired: return
        if not force and a.vm_ready(('D', j, 3)) > a.t: return
        ad = lds.addr[('D', j)]; w = ad//65536
        dq.append(lambda: a.wait(vm=('D', j, 3)))
        for d in range(4):
            for t in range(2):
                def f(d=d, t=t):
                    a.lds('ds_read_b64_tr_b16 %s, v%d offset:%d' % (dreg(j, d*4 + t*2, 2), DA+4*w+d, ad - w*65536 + t*512), ('dr', j))
                    if d == 3 and t == 1: dst['rel'].append(j)
                dq.append(f)
        dst['next'] += 1
    pubs = [int(c) for c in str(P.PUBS)] if P.PUBS else sorted(set([2, A] + list(range(A, 8))))
    pub = dict(done=0, stores=[], tg=(pubs if cls == 0 else [nstrip]))
    def flag_atomic(val):
        a('s_mov_b32 s%d, %d' % (S_FV, val))
        for st in range(nstrip):
            a('s_atomic_umax s%d, s[%d:%d], s%d%s' % (S_FV, S_H, S_H+1, T_FL, ' offset:%d' % (128*st) if st else ''))
    def pub_try(force=False):
        if not pub['tg']: return False
        ok = [cnt for cnt in pub['stores'] if a.vm_ready(('hs', cnt)) <= a.t or force]
        if not ok or max(ok) < pub['tg'][0]: return False
        c = max(ok)
        a.wait(vm=('hs', c))
        if c == NPUB and (P.LASTAT or cls):
            if a.lg: a.wait(lg='all')
            flag_atomic(c if cls == 0 else 1); a.sm = a.t + P.ALAT
        else:
            a('v_mov_b32 v1, %d' % c)
            a.vmem('buffer_atomic_umax v1, v%d, %s, s%d offen sc1' % (VGO, sr(S_H), T_FL), 'flag', P.SLAT)
            st8['slow'] = max(st8['slow'], a.t + P.SLAT//2)
        pub['done'] = c; pub['stores'] = [x for x in pub['stores'] if x > c]
        pub['tg'] = [x for x in pub['tg'] if x > c]
        a.raw('; publish %d est %d' % (c, a.t))
        return True
    def gap(budget=2):
        n = 0
        if st8['armed']: fire(); n += 1
        while rq and n < budget and (n == 0 or len(rq) > 3): rq.pop(0)(); n += 1
        if n < budget and can_arm() and a.t - st8['last'] >= pace() - 20: arm(); n += 1
        if n == 0 and pub_try(): return
        if n < budget:
            d_try()
            if dq: dq.pop(0)(); n += 1
    phases = []
    for s in range(10):
        gs = []; wt = []
        for st in range(nstrip):
            if retain: wr = lambda mat, ks, s=s: (2*s+ks)*8 + mat*4
            else: wr = lambda mat, ks, st=st, s=s: ((s % 2)*nstrip + st)*16 + ks*8 + mat*4
            wt += [(('W', st, s, ks, mat), wr(mat, ks)) for mat in range(2) for ks in range(2)]
            for b in range(A):
                for h in range(2):
                    gs.append(dict(acc=acc1(st*A + b) + h*8, wr=wr, x=('X', b, s), h=h, first=(s == 0), w=(st, s), rev=False))
        phases.append(dict(g=gs, wt=wt, xt=[('X', b, s) for b in range(A)], epi=None))
    phases[-1]['epi'] = [(acc1(i), i*110592 if cls == 0 else i*2048) for i in range(nacc)]
    def bphase(bl, ss, first):
        gs = []
        for b in bl:
            for h in range(2):
                for i, s in enumerate(ss):
                    gs.append(dict(acc=acc1(b) + h*8, wr=(lambda mat, ks, s=s: (2*s+ks)*8 + mat*4), x=('X', b, s), h=h,
                                   first=(first and i == 0), w=None, rev=(i % 2 == 1)))
        phases.append(dict(g=gs, wt=[], xt=[('X', b, s) for b in bl for s in ss], epi=None))
    if retain:
        if cold: bphase(range(A, nblk), cold, True)
        for b in range(A, nblk):
            so = [s for s in range(10) if s not in cold]
            if cold: bphase([b], so, False)
            else: bphase([b], so[:5], True); bphase([b], so[5:], False)
            phases[-1]['epi'] = [(acc1(b), b*110592)]
    gi = 0
    for ph in phases:
        for g in ph['g']: g['id'] = gi; gi += 1
        ph['tiles'] = [t for t, _ in ph['wt']] + ph['xt']
        ph['end'] = max(tiles.index(t) for t in ph['tiles']) + 1
    def xread(g, ks):
        ad = lds.addr[g['x']] + g['h']*2048; w = ad//65536
        a.lds('ds_read_b128 %s, v%d offset:%d' % (vr(XR + (g['id'] % RING)*8 + ks*4), XA+2*w+ks, ad - w*65536), ('x', g['id'], ks))
    def wread(t, reg, tt):
        ad = lds.addr[t]; w = ad//65536
        a.lds('ds_read_b64_tr_b16 %s, v%d offset:%d' % (vr(reg + tt*2, 2, 'a'), WA+w, ad - w*65536 + tt*512), t + (tt,))
    def head_reads(ph, nx):
        q = []
        xs = [(g, ks) for g in ph['g'][:nx] for ks in range(2)]
        for i, (t, reg) in enumerate(ph['wt']):
            q += [lambda t=t, reg=reg: wread(t, reg, 0), lambda t=t, reg=reg: wread(t, reg, 1)]
            if i < 2 or i == 3:
                for _ in range(1 if i < 2 else 2):
                    if xs: g, ks = xs.pop(0); q.append(lambda g=g, ks=ks: xread(g, ks))
        q += [lambda g=g, ks=ks: xread(g, ks) for g, ks in xs]
        return q
    def barrier(vm_tags):
        flush_armed()
        a.wait(vm=list(vm_tags), lg='all')
        d_release()
        a('s_barrier')
        for j in dst['relb']: lds.release(('D', j))
        dst['relb'] = []
    slow = []
    def check_go():
        a.wait(vm='go')
        lab = 'L_go_%s' % name
        a('v_readfirstlane_b32 s%d, v%d' % (S_T0, VGO))
        a('v_lshlrev_b32 v%d, 24, v0' % VGO)
        a('s_cmp_eq_u32 s%d, 0' % S_T0); a('s_cbranch_scc1 %ss' % lab)
        a.label(lab)
        def emit():
            a.label(lab + 's')
            a('s_mov_b32 s%d, 0' % S_SPIN)
            a.label(lab + 'w')
            a('s_sleep 2')
            a('buffer_load_dword v1, v%d, %s, 0 offen sc1' % (VZ, sr(S_DBG)))
            a('s_waitcnt vmcnt(0)')
            a('v_readfirstlane_b32 s%d, v1' % S_T0)
            a('s_add_u32 s%d, s%d, 1' % (S_SPIN, S_SPIN)); a('s_cmp_gt_u32 s%d, 0x80000' % S_SPIN); a('s_cbranch_scc1 %s' % lab)
            a('s_cmp_eq_u32 s%d, 0' % S_T0); a('s_cbranch_scc1 %sw' % lab)
            a('s_branch %s' % lab)
        slow.append(emit)
    def epilogue(items, tailq):
        st8['epi'] = True
        a('s_nop 7' if len(items) == 1 else 's_nop 1')
        for n, (ab, hoff) in enumerate(items):
            T = ET
            G = [ab + h*8 + 2*p for h in range(2) for p in range(2)]
            def em(t, c=4): a(t, c); gap(1)
            for i in range(4): em('v_pk_mul_f32 %s, %s, %s' % (vr(T+2*i, 2), vr(G[i], 2), vr(G[i], 2)))
            for i in range(4): em('v_pk_fma_f32 %s, %s, s[%d:%d], s[%d:%d] op_sel:[0,0,1] op_sel_hi:[1,0,1]' % (vr(T+2*i, 2), vr(T+2*i, 2), S_C, S_C+1, S_C, S_C+1))
            for i in range(4): em('v_pk_mul_f32 %s, %s, %s' % (vr(T+2*i, 2), vr(T+2*i, 2), vr(G[i], 2)))
            for i in range(8): em('v_exp_f32 v%d, v%d' % (T+i, T+i), 8)
            for i in range(4): em('v_pk_add_f32 %s, %s, 1.0 op_sel_hi:[1,0]' % (vr(T+2*i, 2), vr(T+2*i, 2)))
            for i in range(8): em('v_rcp_f32 v%d, v%d' % (T+i, T+i), 8)
            if n == len(items)-1: rq.extend(tailq)
            for i in range(4): em('v_pk_mul_f32 %s, %s, %s' % (vr(T+2*i, 2), vr(T+2*i, 2), vr(G[i], 2)))
            for i in range(4): em('v_pk_mul_f32 %s, %s, %s' % (vr(T+2*i, 2), vr(T+2*i, 2), vr(G[i]+4, 2)))
            for i in range(4): em('v_cvt_pk_bf16_f32 v%d, v%d, v%d' % (ab+i, T+2*i, T+2*i+1))
            flush_armed()
            a('s_mov_b32 s%d, %d' % (S_HO, hoff)); a('s_nop 0')
            a('v_permlane16_swap_b32 v%d, v%d' % (ab, ab+2))
            a('v_permlane16_swap_b32 v%d, v%d' % (ab+1, ab+3))
            nst[0] += 1
            a.vmem('buffer_store_dwordx4 %s, v%d, %s, s%d offen sc1' % (vr(ab), VH, sr(S_H), S_HO), ('hs', nst[0]), P.SLAT, 20)
            pub['stores'].append(nst[0]); st8['slow'] = a.t + P.SLAT
        st8['epi'] = False
    PL = 'buffer_load_dwordx4 v[4:7], v%d, %s, 0 offen sc1' % (VPA, sr(S_H))
    def rdy_test(u): return ['s_bfe_u32 s%d, s%d, 0x%x' % (S_T0, S_RDY + u//4, (8 << 16) | ((u % 4)*8)), 's_cmp_eq_u32 s%d, 0xff' % S_T0]
    def poll_issue(u=None):
        if u is None:
            a('s_mov_b64 %s, 0' % sr(S_RDY, 2)); a.vmem(PL, 'poll', P.LLAT); return
        for t in rdy_test(u): a(t)
        a('s_cselect_b32 s%d, 0x40000000, 0' % S_T1)
        a.vmem('buffer_load_dwordx4 v[4:7], v%d, %s, s%d offen sc1' % (VPA, sr(S_H), S_T1), 'poll', P.LLAT)
    def poll_eval():
        a('v_min_u32 v4, v4, v5'); a('v_min3_u32 v4, v4, v6, v7')
        a('v_cmp_gt_u32 vcc, v4, v%d' % VPT); a('s_nop 0'); a('s_or_b64 %s, %s, vcc' % (sr(S_RDY, 2), sr(S_RDY, 2)))
    def need_unit(u):
        lab = 'L_nu_%s_%d' % (name, u)
        tst = rdy_test(u)
        for t in tst: a(t)
        a('s_cbranch_scc0 %ss' % lab)
        a.label(lab)
        pend = pub['done'] < NPUB
        assert nst[0] == NPUB
        def emit():
            a.label(lab + 's')
            a('s_mov_b32 s%d, 0' % S_SPIN)
            if pend:
                a('s_waitcnt vmcnt(0) lgkmcnt(0)'); flag_atomic(NPUB if cls == 0 else 1)
            a.label(lab + 'w')
            a('s_lshl_b64 exec, 0xff, %d' % (8*u)); a(PL); a('s_mov_b64 exec, -1'); a('s_waitcnt vmcnt(0) lgkmcnt(0)'); poll_eval()
            for t in tst: a(t)
            a('s_cbranch_scc1 %s' % lab)
            if P.SLEEP: a('s_sleep %d' % P.SLEEP)
            a('s_add_u32 s%d, s%d, 1' % (S_SPIN, S_SPIN)); a('s_cmp_gt_u32 s%d, 0x80000' % S_SPIN); a('s_cbranch_scc0 %sw' % lab)
            a('s_branch %s' % lab)
        slow.append(emit)
    def set_limit(i):
        if i+1 >= len(phases) or phases[i+1]['end'] + P.LOOK >= nA + (9 if retain else 0): st8['limit'] = len(stream); return
        st8['limit'] = phases[i+1]['end'] + P.LOOK
    def pfcode(nm):
        a('s_add_u32 s92, s18, L_code_%s-L_pc' % nm); a('s_addc_u32 s93, s19, 0')
        a('s_mov_b32 s94, L_codeend_%s-L_code_%s' % (nm, nm)); a('s_mov_b32 s95, 0x20000')
        a.vmem('buffer_load_dword v253, v%d, s[92:95], 0 offen' % VPR, 'pf', P.LLAT)

    if cls: a.label('L_cls%d' % cls)
    if cls == 2:
        setup_ptrs(a)
        for i in range(4): a('v_mov_b32 v%d, 0' % (108+i))
        a('s_mov_b32 s%d, %d' % (S_T0, FLAG0)); a('s_mov_b32 s%d, %d' % (S_T1, FLAG0 + 256*128))
        a.vmem('buffer_store_dwordx4 %s, v%d, %s, s%d offen sc1' % (vr(108), VPR, sr(S_H), S_T0), 'rst', P.SLAT)
        a.vmem('buffer_store_dwordx4 %s, v%d, %s, s%d offen sc1' % (vr(108), VPR, sr(S_H), S_T1), 'rst', P.SLAT)
    if P.PFCODE == 2 and cls: pfcode('c0')
    st8['limit'] = phases[0]['end']; dma_now(phases[0]['end'])
    if P.PFCODE == 1 or (P.PFCODE == 2 and cls): pfcode(name)
    a('s_barrier')
    st8['limit'] = len(stream)
    dma_now(max(0, min(12, P.PRO) - st8['pos']))
    if cls != 2: setup_ptrs(a)
    setup_late(a, cls)
    a.label('L_code_%s' % name)
    def spf():
        a('s_lshl_b32 s%d, s%d, 7' % (S_T0, S_WAVE))
        if retain and P.SPF & 1:
            nx = -(-(nblk-A)*320//(27*4))
            a('s_mul_i32 s%d, s%d, %d' % (S_T1, T_ST, nx*4)); a('s_add_u32 s%d, s%d, s%d' % (S_T1, S_T1, S_T0))
            for n in range(nx): a('s_buffer_load_dword s%d, %s, s%d offset:%d' % (S_SPIN, sr(S_X), S_T1, A*40960 + n*512))
        if P.SPF & 2:
            a('s_mul_i32 s%d, s2, 8704' % S_HO); a('s_add_u32 s%d, s%d, s%d' % (S_HO, S_HO, S_T0))
            for n in range(17): a('s_buffer_load_dword s%d, %s, s%d offset:%d' % (S_SPIN, sr(S_WD), S_HO, n*512))
        a.sm = 0
    if P.TOUCH:
        a('v_lshlrev_b32 v252, 20, v0')
        for srd in (S_WD, S_OUT, S_H): a.vmem('buffer_load_dword v253, v252, %s, 0 offen' % sr(srd), 'pf', P.LLAT)
    if P.SPF and P.SPFAT == 0: spf()
    dma_now(max(0, max(P.PRO, phases[0]['end'] + 5) - st8['pos']))
    if P.SPF and P.SPFAT == 1: spf()
    barrier(phases[0]['tiles'] + ['rst'])
    if cls == 2:
        a('v_mov_b32 v1, 1'); a('s_mov_b64 exec, 1')
        a.vmem('buffer_store_dword v1, v%d, %s, s%d offen sc1' % (VZ, sr(S_DBG), S_M0X), 'gost', P.SLAT)
        a('s_mov_b64 exec, -1')
    a.stamp('ph0')
    a.t = 0; a.mf = -100; st8['last'] = -10000
    a.vm = [(x, 600) for x, _ in a.vm]
    D = P.D
    for f in head_reads(phases[0], D): f()
    nxt = D
    set_limit(0)
    for pi, ph in enumerate(phases):
        gs = ph['g']; ng = len(gs)
        nph = phases[pi+1] if pi+1 < len(phases) else None
        if pi == 4: a.vmem('buffer_load_dword v%d, v%d, %s, 0 offen sc1' % (VGO, VZ, sr(S_DBG)), 'go', P.LLAT)
        BU = max(ng - 4, 0)
        seen = set()
        for u, g in enumerate(gs):
            while nxt < ng and nxt <= u + D:
                rq.extend([lambda g2=gs[nxt]: xread(g2, 0), lambda g2=gs[nxt]: xread(g2, 1)]); nxt += 1
            xb = XR + (g['id'] % RING)*8
            order = ((1,0),(1,1),(0,0),(0,1)) if g['rev'] else ((0,0),(0,1),(1,0),(1,1))
            for i, (mat, ks) in enumerate(order):
                need = [('x', g['id'], ks)]
                if i == 0 and (not g['w'] or g['w'] in seen): need.append(('x', g['id'], 1))
                if g['w'] and g['w'] not in seen: need += [('W',) + g['w'] + (ks, mat, tt) for tt in range(2)]
                while any(n not in a.issued for n in need): rq.pop(0)()
                a.wait(lg=need)
                c = '0' if (g['first'] and ks == 0) else vr(g['acc'] + mat*4)
                a.mfma(vr(g['acc'] + mat*4), vr(g['wr'](mat, ks), 4, 'a'), vr(xb + ks*4), c)
                gap()
            if g['w']: seen.add(g['w'])
            late = ph['epi'] is not None and nph is not None
            if u == BU and not (late and pi == 9):
                while rq: rq.pop(0)()
                assert nxt == ng
                if nph:
                    flush_armed()
                    while st8['pos'] < nph['end']: dma_now()
                    while st8['pos'] < min(nph['end'] + P.TOP, nA if cls == 0 else 999) and can_arm(): dma_now()
                if pi == 8: check_go()
                barrier(nph['tiles'] if nph else [])
                for t in ph['tiles']: lds.release(t)
                set_limit(pi+1)
                a.stamp('b%d' % (pi+1), lvl=2)
                if nph and not late: rq.extend(head_reads(nph, 2))
        if ph['epi'] is not None:
            a.stamp('m%d' % pi)
            if nph is None and retain: dd[13] = dd[13][:2] + (0,)
            if pi == 9 and nph:
                barrier([])
                for t in ph['tiles']: lds.release(t)
                set_limit(pi+1)
                epilogue(ph['epi'][:-1], [])
                flush_armed()
                while st8['pos'] < nph['end']: dma_now()
                barrier(nph['tiles'])
                a('s_nop 0')
                epilogue(ph['epi'][-1:], head_reads(nph, D))
            else:
                if nph is None and cls == 0 and retain: poll_issue()
                epilogue(ph['epi'], head_reads(nph, D) if nph else [])
            while rq: rq.pop(0)()
            nxt = D
            a.stamp('e%d' % pi)
        else:
            nxt = 2
    dst['avail'] = 99
    flush_armed()
    a.raw('; D tiles left at P1 end: %d, next read group %d' % (len(stream) - st8['pos'], dst['next']))
    def hreg(u, j): p, b = HB3[u % 3]; return vr(b + 4*j, 4, p)
    hq = []
    for u in range(nun):
        def ctl(u=u):
            a.wait(vm='poll'); poll_eval(); need_unit(u)
            a('s_mul_i32 s%d, s%d, 55296' % (S_HL, T_U+u)); a('v_add_u32 v%d, s%d, v%d' % (VHT, S_HL, VHL))
            a.stamp('n%d' % u, lvl=2)
        hq.append((u, -1, ctl))
        for j in range(14):
            if j == 14 - P.POLLB and u < nun-1: hq.append((u, j, lambda u=u: poll_issue(u+1)))
            hq.append((u, j, lambda u=u, j=j: a.vmem('buffer_load_dwordx4 %s, v%d, %s, s%d offen sc1' % (hreg(u, j), VHT, sr(S_H), S_JO+j), ('h', u, j), P.LLAT)))
    prog = [0, 0, 4 + P.LA]
    def h_pop(n=1):
        for _ in range(n):
            if hq and (hq[0][0]-3, hq[0][1]) < (prog[0], prog[1]) and 14*hq[0][0] + hq[0][1] < prog[2]: hq.pop(0)[2]()
    polled = [cls == 0 and retain]
    def d_step():
        while dq: dq.pop(0)()
        if st8['pos'] >= len(stream): return False
        if not polled[0] and pub['done'] == NPUB and len(stream) - st8['pos'] <= P.POLLB: poll_issue(); polled[0] = True
        if can_arm(): dma_now(); return True
        d_try()
        if dq: return True
        if dst['rel']: a.wait(lg='all'); d_release(); return True
        d_try(True); assert dq
        return True
    k = 0
    while k < P.PREH:
        pub_try()
        n0 = len(a.vm)
        if not d_step():
            if not polled[0]: break
            h_pop()
        k += max(0, len(a.vm) - n0) if len(a.vm) != n0 else 0
        if not hq or 14*hq[0][0] + hq[0][1] >= prog[2]: break
    while True:
        d_try()
        if not dq: break
        while dq: dq.pop(0)()
    pub_try(True)
    assert pub['done'] == NPUB
    a.stamp('pub')
    while d_step(): pass
    if not polled[0]: poll_issue()
    a.stamp('dissued', lvl=2)
    while dst['next'] < 14 or dq:
        d_try()
        if not dq:
            if hq and 14*hq[0][0] + hq[0][1] < prog[2]: h_pop(); continue
            d_try(True)
        while dq: dq.pop(0)()
    a.wait(lg='all')
    a.stamp('dread')
    for d in range(1, 4): a('v_xor_b32 v%d, %d, v%d' % (DA+d, d*1024, VRD))
    for d in range(0, 4): a('v_add_u32 v%d, 65536, v%d' % (DA+4+d, DA+d if d else VRD))
    a('v_bfe_u32 v%d, v0, 4, 1' % (DA+8))
    def acc2(u, d): return vr(OWN + 4*u) if d == 0 else vr(ACC2 + (u % 2)*12 + (d-1)*4, 4, 'a')
    def red_write(u, d):
        off = (u*3 + d-1)*4096
        a.lds('ds_write_b128 v%d, %s offset:%d' % (DA + d + 4*(off//65536), acc2(u, d), off % 65536), ('rw', u))
    def red_items(u0, u1, q):
        us = [u0] + ([u1] if u1 is not None else [])
        it = []
        for n, u in enumerate(us):
            for d in range(1, 4):
                off = (u*3 + d-1)*4096
                it.append(lambda n=n, u=u, d=d, off=off: a.lds('ds_read_b128 %s, v%d offset:%d' % (vr(RT + 12*n + 4*(d-1)), VRD if off < 65536 else DA+4, off % 65536), ('rr', u)))
        S0, S1 = S_KW, S_DO
        it.append(lambda: a('s_mov_b32 s%d, s%d' % (S0, T_O0)) if u0 == 0 else a('s_mul_i32 s%d, s%d, 20480' % (S0, T_U+u0)))
        it.append(lambda: a('s_mul_i32 s%d, s%d, 20480' % (S1, T_U+u1)) if u1 is not None else a('s_mov_b32 s%d, 0x40000000' % S1))
        it.append(lambda: a('s_sub_u32 s%d, s%d, s%d' % (S1, S1, S0)))
        it.append(lambda: a('v_mul_lo_u32 v1, v%d, s%d' % (DA+8, S1)))
        it.append(lambda: a('v_add3_u32 v1, v1, v%d, s%d' % (VO, S0)))
        for n, u in enumerate(us):
            o = OWN + 4*u; r = RT + 12*n
            it.append(lambda u=u: a.wait(lg=('rr', u)))
            for i in range(4): it.append(lambda i=i, r=r: a('v_add_f32 v%d, v%d, v%d' % (r+i, r+i, r+4+i)))
            for i in range(4): it.append(lambda i=i, r=r, o=o: a('v_add_f32 v%d, v%d, v%d' % (o+i, o+i, r+8+i)))
            for i in range(4): it.append(lambda i=i, r=r, o=o: a('v_add_f32 v%d, v%d, v%d' % (o+i, o+i, r+i)))
            for p in range(2): it.append(lambda n=n, p=p, o=o: a('v_cvt_pk_bf16_f32 v%d, v%d, v%d' % (q + 2*n + p, o+2*p, o+2*p+1)))
        def fin():
            a('s_nop 1')
            a('v_permlane16_swap_b32 v%d, v%d' % (q, q+2))
            a('v_permlane16_swap_b32 v%d, v%d' % (q+1, q+3))
            a.vmem('buffer_store_dwordx4 %s, v1, %s, 0 offen%s' % (vr(q), sr(S_OUT), ['', ' sc1', ' nt', ' sc0 sc1'][P.OPOL]), 'o', 400)
        it.append(fin)
        return it
    wq = []; red = []
    CH = [(0, 4), (4, 7), (7, 11), (11, 14)]
    for u in range(nun):
        last = u == nun - 1
        for ci, (j0, j1) in enumerate(CH):
            prog[0], prog[1] = u, j0
            while hq and 14*hq[0][0] + hq[0][1] < 14*u + j1 + P.LA: h_pop()
            prog[2] = 14*u + j1 + P.LA + (CH[(ci+1) % 4][1] - CH[(ci+1) % 4][0])
            if u == 1 and ci == 0: a('s_barrier')
            if ci == 1 and u in (2, 4):
                assert not wq and not red
                a.wait(lg='all'); a('s_barrier')
                red = red_items(u-2, u-1, OQ + (u-2)*2)
            a.wait(vm=('h', u, j1-1))
            n = 0
            for d in ((1, 2, 3, 0) if (last and ci == 3) else (0, 1, 2, 3)):
                for j in range(j0, j1):
                    a.mfma(acc2(u, d), dreg(j, d*4, 4), hreg(u, j), '0' if j == 0 else acc2(u, d))
                    n += 1
                    if wq and n >= 9 and n % 2 == 0: wq.pop(0)()
                    elif n % P.HP == 1 and hq: h_pop()
                    else:
                        for _ in range(2):
                            if red: red.pop(0)()
        wq = [lambda u=u, d=d: red_write(u, d) for d in range(1, 4)]
        a.stamp('u%d' % u, lvl=(1 if last or u == 0 else 2))
    while red: red.pop(0)()
    wq.pop(0)(); a('s_nop 1'); wq.pop(0)(); a('s_nop 2'); wq.pop(0)()
    a.wait(lg='all'); a('s_barrier')
    for f in red_items(4, 5 if nun == 6 else None, OQ): f()
    a.stamp('end')
    if P.diag:
        a.wait(vm='all')
        a.stamp('end2', False, 0); a.stamp('end_rt', True, 0)
        a('s_getreg_b32 s98, hwreg(HW_REG_XCC_ID)'); a('v_writelane_b32 v255, s98, 63')
        a('v_writelane_b32 v255, s%d, 62' % T_CLS); a('v_writelane_b32 v255, s%d, 61' % T_K0)
        if P.DBGOUT:
            a('v_readlane_b32 s96, v255, 0'); a('v_readlane_b32 s97, v255, %d' % (a.nstamp-1)); a('s_nop 3')
            a('s_not_b32 s95, s96'); a('v_mov_b32 v2, s97'); a('v_mov_b32 v3, s95'); a('v_mov_b32 v1, 0')
            a('s_mov_b64 exec, 1')
            a('buffer_atomic_umax v2, v1, %s, 0 offen offset:4 sc1' % sr(S_DBG))
            a('buffer_atomic_umax v3, v1, %s, 0 offen offset:8 sc1' % sr(S_DBG))
            a('s_mov_b64 exec, -1')
            a('v_subrev_u32 v2, s96, v255'); a('v_lshlrev_b32 v3, 2, v0')
            a('s_lshl_b32 s95, s2, 2'); a('s_add_u32 s95, s95, s%d' % S_WAVE); a('s_cmp_eq_u32 s95, 404'); a('s_cselect_b32 s95, 4, 0x10000')
            a('s_mov_b64 exec, 0x7ffc')
            a('buffer_store_dword v2, v3, %s, s95 offen' % sr(S_DBG))
            a('s_mov_b64 exec, -1')
        a('s_mov_b32 s%d, 0x4000000' % (S_H+2))
        a('s_lshl_b32 s98, s2, 2'); a('s_add_u32 s98, s98, s%d' % S_WAVE); a('s_lshl_b32 s98, s98, 8')
        a('s_add_u32 s98, s98, %d' % (16 << 20))
        a('v_lshlrev_b32 v254, 2, v0')
        a('buffer_store_dword v255, v254, %s, s98 offen' % sr(S_H))
        a('s_waitcnt vmcnt(0)')
        a.raw('; nstamp %d cls %d' % (a.nstamp, cls))
        if P.diag == 2: a.raw('; realtime stamps')
    a('s_endpgm')
    for f in slow: f()
    a.label('L_codeend_%s' % name)

SCH = {1: [[0,2,1,3,6,4,5,7,8,9], [0,1,4,2,3,8,6,5,9,7], [1,3,0,2,7,5,4,6,8,9], [1,0,5,2,3,9,7,4,6,8]],
       5: [[0,1,2,3,4,5,6,7,8,9]]}
def jobs():
    nspec = [2, 2, 2, 1, 1, 2, 2, 1]
    tiles = [(s, g) for s in range(27) for g in range(9)]
    p1 = {x: [] for x in range(8)}; pos = 0
    for p in range(4):
        n0, n1 = 32 - nspec[2*p], 32 - nspec[2*p+1]
        mine = sorted(tiles[pos:pos+n0+n1], key=lambda t: (t[1], t[0])); pos += n0+n1
        p1[2*p] = [(0,) + t for t in mine[:n0]]; p1[2*p+1] = [(0,) + t for t in mine[n0:]]
    assert pos == 243
    st = 0
    for x in range(8):
        for i in range(nspec[x]):
            c = 2 if (x == 6 and i == 1) else 1
            p1[x].append((c, st, 9)); st += c+1
    assert st == 27
    nmat = [(7,6,7,6), (6,7,6,7), (7,6,6,7), (6,7,6,6), (6,6,7,6)]
    p2 = {}; drot = {}; dupc = set()
    def pos_of(u):
        b = u//2
        return (b % 7) if b < 63 else 3.5
    for half in range(2):
        xs = [2*q + half for q in range(4)]
        avail = {x: [i for i, j in enumerate(p1[x]) if j[0] != 1] for x in xs}
        s2 = [(x, i) for x in xs for i, j in enumerate(p1[x]) if j[0] == 1]
        assert len(s2) == 6, s2
        six = {3: s2[0::2], 4: s2[1::2]}
        for si in range(5):
            ds = 5*half + si
            cus = []
            for q, x in enumerate(xs):
                sp = [i for (xx, i) in six.get(si, []) if xx == x]
                l = [(x, i, 6) for i in sp]
                for _ in range(nmat[si][q] - len(sp)): l.append((x, avail[x].pop(), 5))
                cus.append(l)
            extra = sum(c[2] for l in cus for c in l) - 128
            assert extra in (0, 2)
            u0 = 0
            for q, l in enumerate(cus):
                n = sum(c[2] for c in l)
                dup = 1 if (extra and nmat[si][q] == 7) else 0
                us = list(range(u0, u0 + n - dup)); u0 += n - dup
                us.sort(key=lambda u: (pos_of(u), u))
                if dup: us.insert(0, us[0]); dupc.add((l[0][0], l[0][1]))
                asg = {c: [] for c in l}
                k = 0
                for c in l:
                    if c[2] == 6: asg[c].append(us[k]); k += 1
                for rd in range(5):
                    for c in l: asg[c].append(us[k]); k += 1
                for n_, c in enumerate(l):
                    p2[(c[0], c[1])] = (ds, asg[c]); drot[(c[0], c[1])] = ((n_ + si) % len(l))*14//len(l)
            assert u0 == 128
    recs = []
    sch = SCH[P.SCHED]
    if len(sch) > 1: assert set(o[i] for o in sch for i in XCOLD) == set(range(10))
    for wg in range(256):
        x, i = wg % 8, wg // 8
        c, s, g = p1[x][i]
        blk0 = g*7
        order = sch[(s + g) % len(sch)]
        assert sorted(order) == list(range(10))
        k0 = sum(order[i] << (4*i) for i in range(8)); k1 = order[8] | (order[9] << 4)
        ds, us = p2[(x, i)]
        us = us + [us[-1]]*(6-len(us))
        recs.append((c, blk0*40960, s*128, k0, blk0*110592 + s*2048, (g*27 + s)*128, ds*128, drot[(x, i)]) + tuple(us) + (0x40000000 if (x, i) in dupc else us[0]*20480, k1))
    cover = [(r[6], u) for r in recs for u in r[(9 if r[14] == 0x40000000 else 8):8+(6 if r[0] == 1 else 5)]]
    assert len(cover) == 1280 and len(set(cover)) == 1280
    return recs

def build():
    a = Asm()
    hdr = open('standalone__glu_gated_geglu__prompt.s.ref').read().split('\n')[:8]
    for l in hdr: a.raw(l)
    a.raw('; @launch grid=(256,1,1) block=(256,1,1) lds=163840')
    a.raw('.amdgcn_target "amdgcn-amd-amdhsa--gfx950"'); a.raw('.text')
    a.raw('.globl %s\n.p2align 8\n.type %s,@function' % (KN, KN)); a.label(KN)
    setup_common(a)
    ns = a.nstamp
    for cls in range(3):
        a.reset(); a.nstamp = ns
        gen_class(a, cls)
    a.label('L_end'); a('s_endpgm')
    a.raw('.p2align 6'); a.raw('.type jobtab,@object'); a.label('jobtab')
    for r in jobs(): a.raw('.long ' + ', '.join(str(int(x)) for x in r))
    a.raw('.size jobtab, %d' % (64*256))
    a.raw('''.section .rodata,"a"
.p2align 6
.amdhsa_kernel %s
  .amdhsa_next_free_vgpr 512
  .amdhsa_next_free_sgpr 102
  .amdhsa_accum_offset 256
  .amdhsa_group_segment_fixed_size 0
  .amdhsa_kernarg_size 56
  .amdhsa_user_sgpr_count 2
  .amdhsa_user_sgpr_kernarg_segment_ptr 1
  .amdhsa_system_sgpr_workgroup_id_x 1
  .amdhsa_float_denorm_mode_32 3
.end_amdhsa_kernel''' % KN)
    return '\n'.join(a.L) + '\n'

if __name__ == '__main__':
    out = sys.argv[1]
    for kv in sys.argv[2:]:
        k, v = kv.split('='); assert hasattr(P, k), k; setattr(P, k, int(v))
    txt = build()
    open(out, 'w').write(txt)
```

```python
import sys, math, struct

M, DM, DF = 2048, 640, 1728
XB, WB, OB = M*DM*2, DM*DF*2, M*DM*2
FLAG0 = 8 << 20
WSB = FLAG0 + 270*128
C1 = -2.0*math.sqrt(2.0/math.pi)*math.log2(math.e)
C2 = C1*0.044715
def f2u(x): return struct.unpack('<I', struct.pack('<f', x))[0]
KN = 'standalone__glu_gated_geglu__prompt_kernel'

class P:
    A = 4; SCHED = 1; PACE = 48; LOOK = 12; TOP = 10; PRO = 16; D = 4; PFCODE = 2; diag = 0
    LLAT = 900; CLAT = 1800; SLAT = 1100; ALAT = 1000
    PUBS = 0; POLLB = 9; HP = 3; SLEEP = 4
    DC = 12; PHIT = 72; PSLOW = 140; PAUSE = 800; XC = 1; XPRE = 3; PWG = -1; PROBE = -1; OPOL = 0; TOUCH = 0; DBGOUT = 0; SPF = 0; SPFAT = 0; PXC = 60; XPAUSE = 1300; PXR = 80; PDC = 200; LA = 12; EPACE = 100; LASTAT = 1; PREH = 8; MAP2 = 0
    STAMPS = 1

class Asm:
    def __init__(s):
        s.L = []; s.reset()
    def reset(s):
        s.vm = []; s.lg = []; s.nstamp = 0; s.t = 0; s.mf = -100; s.sm = None; s.issued = set()
    def __call__(s, t, c=4): s.L.append('    ' + t); s.t += c
    def label(s, t): s.L.append(t + ':')
    def raw(s, t): s.L.append(t)
    def mfma(s, d, a_, b, c):
        s.t = max(s.t, s.mf + 16); s.mf = s.t
        s('v_mfma_f32_16x16x32_bf16 %s, %s, %s, %s' % (d, a_, b, c), 8)
    def vmem(s, t, tag, lat, c=4):
        s(t, c); prev = s.vm[-1][1] if s.vm else 0
        s.vm.append((tag, max(prev, s.t + lat)))
    def lds(s, t, tag): s(t); s.lg.append(tag); s.issued.add(tag)
    def vm_ready(s, tag):
        r = 0
        for x, t in s.vm:
            if x == tag: r = t
        return r
    def wait(s, vm=None, lg=None):
        parts = []
        if vm is not None:
            if vm == 'all': n = 0 if s.vm else None
            else:
                tags = vm if isinstance(vm, list) else [vm]
                idx = max([i for i, x in enumerate(s.vm) if x[0] in tags], default=-1)
                n = None if idx < 0 else len(s.vm) - 1 - idx
            if n is not None:
                n = min(n, 63); parts.append('vmcnt(%d)' % n)
                s.t = max(s.t, s.vm[len(s.vm)-1-n][1])
                s.vm = s.vm[len(s.vm)-n:] if n else []
        if lg is not None:
            if lg == 'all': n = 0 if s.lg else None
            else:
                tags = lg if isinstance(lg, list) else [lg]
                idx = max([i for i, x in enumerate(s.lg) if x in tags], default=-1)
                n = None if idx < 0 else len(s.lg) - 1 - idx
            if n is not None:
                if s.sm is not None: n = 0; s.t = max(s.t, s.sm); s.sm = None
                n = min(n, 15); parts.append('lgkmcnt(%d)' % n); s.lg = s.lg[len(s.lg)-n:] if n else []
        if parts: s('s_waitcnt ' + ' '.join(parts))
    def stamp(s, name='', real=False, lvl=1):
        if not P.diag or lvl > P.STAMPS:
            s.raw('; mark %s est %d' % (name, s.t)); return
        s('%s s[98:99]' % ('s_memrealtime' if (real or (P.diag == 2 and name not in ('entry', 'end2'))) else 's_memtime'), 0); s('s_waitcnt lgkmcnt(0)', 0)
        s('v_writelane_b32 v255, s98, %d' % s.nstamp, 0)
        s.raw('; stamp %d %s est %d' % (s.nstamp, name, s.t)); s.nstamp += 1

def vr(b, n=4, p='v'): return '%s[%d:%d]' % (p, b, b+n-1)
def sr(b, n=4): return 's[%d:%d]' % (b, b+n-1)

S_X, S_WG, S_WU, S_WD, S_OUT, S_H, S_DBG = 20, 24, 28, 32, 36, 40, 44
S_WAVE, S_M0X, S_M0W, S_KW, S_T0, S_T1, S_HO, S_DO, S_HL, S_FV = 48, 49, 50, 51, 52, 53, 54, 55, 56, 57
S_RDY = 58; S_C = 62; S_TAB = 64; S_KX = 80; S_SPIN = 90; S_JO = 4
T_CLS, T_XO, T_ST, T_K0, T_HO, T_FL, T_DS, T_DR, T_U = [S_TAB+i for i in range(9)]
T_O0 = S_TAB+14; T_K1 = S_TAB+15
VGO, VZ = 8, 9
VXD = 10; VWD = 17; VDD = 19; XA = 23; WA = 29; DA = 32
VH, VHL, VHT, VPA, VPT, VPR, VRD, VO = 44, 45, 46, 47, 48, 49, 50, 51
XR = 52; RING = 6; ET = 100
def acc1(b): return 204 - 16*b
HB3 = [('a', 0), ('a', 56), ('v', 52)]; ACC2 = 112; OWN = 108; OQ = 132; RT = 8

class Lds:
    def __init__(s):
        s.free = list(range(10)); s.cur = None; s.fill = 4; s.live = {}; s.addr = {}
    def can(s, quad): return bool(s.free) if (quad or s.fill == 4) else True
    def alloc(s, key, quad):
        if quad:
            q = s.free.pop(0); s.live[q] = {key}; s.addr[key] = q*16384; return
        if s.fill == 4:
            s.cur = s.free.pop(0); s.fill = 0; s.live[s.cur] = {'open'}
        s.live[s.cur].add(key); s.addr[key] = s.cur*16384 + s.fill*4096; s.fill += 1
        if s.fill == 4: s.live[s.cur].discard('open')
    def close(s):
        if s.fill < 4:
            s.fill = 4; s.live[s.cur].discard('open'); s._chk(s.cur)
    def _chk(s, q):
        if not s.live[q]: del s.live[q]; s.free.append(q)
    def release(s, key):
        q = s.addr[key]//16384; s.live[q].discard(key); s._chk(q)

def setup_common(a):
    a.stamp('entry_rt', True, 0); a.stamp('entry', False, 0)
    a('s_cmp_ge_u32 s2, 256'); a('s_cbranch_scc1 L_end')
    a('s_load_dwordx8 s[4:11], s[0:1], 0')
    a('s_load_dwordx4 s[12:15], s[0:1], 32')
    a('s_load_dwordx2 s[16:17], s[0:1], 48')
    a('s_getpc_b64 s[18:19]'); a.label('L_pc')
    a('s_add_u32 s92, s18, jobtab-L_pc'); a('s_addc_u32 s93, s19, 0')
    a('s_lshl_b32 s3, s2, 6')
    a('s_load_dwordx16 %s, s[92:93], s3' % sr(S_TAB, 16))
    a('v_lshrrev_b32 v1, 6, v0'); a('v_lshlrev_b32 v%d, 7, v0' % VPR)
    a('v_and_b32 v0, 63, v0')
    a('v_readfirstlane_b32 s%d, v1' % S_WAVE)
    for b, sz in ((S_X, XB), (S_WG, WB), (S_WU, WB), (S_WD, WB), (S_OUT, OB), (S_H, WSB), (S_DBG, 256)):
        a('s_mov_b32 s%d, %d' % (b+2, sz)); a('s_mov_b32 s%d, 0x20000' % (b+3))
    a('s_lshl_b32 s%d, s%d, 10' % (S_M0X, S_WAVE))
    a('s_lshl_b32 s%d, s%d, 12' % (S_M0W, S_WAVE))
    a('s_mov_b32 s%d, 0x%08x' % (S_C, f2u(C2))); a('s_mov_b32 s%d, 0x%08x' % (S_C+1, f2u(C1)))
    l8, p8, m, g, r, c = 2, 3, 4, 5, 6, 7
    t0, t1 = ET, ET+1
    a('v_lshrrev_b32 v%d, 3, v0' % l8); a('v_and_b32 v%d, 7, v0' % p8)
    a('v_and_b32 v%d, 15, v0' % m); a('v_lshrrev_b32 v%d, 4, v0' % g)
    a('v_bfe_u32 v%d, v0, 2, 2' % r); a('v_and_b32 v%d, 3, v0' % c)
    a('v_mov_b32 v%d, 0' % VZ)
    a('s_lshl_b32 s%d, s%d, 3' % (S_T0, S_WAVE))
    a('v_add_u32 v%d, s%d, v%d' % (t0, S_T0, l8))
    a('v_bfe_u32 v%d, v%d, 1, 3' % (t1, t0))
    a('v_xor_b32 v%d, v%d, v%d' % (t1, t1, p8))
    a('v_mul_u32_u24 v%d, 1280, v%d' % (VXD, t0))
    a('v_lshl_add_u32 v%d, v%d, 4, v%d' % (VXD, t1, VXD))
    for b in range(1, 7): a('v_add_u32 v%d, %d, v%d' % (VXD+b, b*40960, VXD))
    a('v_mul_u32_u24 v%d, 3456, v%d' % (t0, t0))
    a('s_and_b32 s%d, s%d, 1' % (S_T0, S_WAVE)); a('s_lshl_b32 s%d, s%d, 2' % (S_T0, S_T0))
    a('v_and_b32 v%d, 2, v%d' % (t1, l8))
    a('v_xor_b32 v%d, v%d, v%d' % (t1, t1, p8))
    a('v_xor_b32 v%d, s%d, v%d' % (VWD, S_T0, t1))
    a('v_lshl_add_u32 v%d, v%d, 4, v%d' % (VWD, VWD, t0))
    a('v_add_u32 v%d, %d, v%d' % (VWD+1, 32*3456, VWD))
    a('s_mul_i32 s%d, s%d, 448' % (S_T0, S_WAVE))
    a('v_add_u32 v%d, s%d, v%d' % (t0, S_T0, l8))
    a('v_mul_u32_u24 v%d, 1280, v%d' % (t0, t0))
    a('v_lshl_add_u32 v%d, v%d, 4, v%d' % (VDD, t1, t0))
    a('v_xor_b32 v%d, 64, v%d' % (VDD+1, VDD))
    a('v_add_u32 v%d, %d, v%d' % (VDD+1, 8*1280, VDD+1))
    a('v_lshrrev_b32 v%d, 1, v%d' % (t0, m))
    a('v_xor_b32 v%d, v%d, v%d' % (t0, t0, g))
    a('v_lshlrev_b32 v%d, 4, v%d' % (t0, t0))
    a('v_lshl_add_u32 v%d, v%d, 7, v%d' % (XA, m, t0))
    a('v_xor_b32 v%d, 64, v%d' % (XA+1, XA))
    a('v_lshrrev_b32 v%d, 1, v%d' % (t0, r))
    a('v_and_b32 v%d, 1, v%d' % (t1, g))
    a('v_lshl_or_b32 v%d, v%d, 1, v%d' % (t0, t1, t0))
    a('v_xor_b32 v%d, s%d, v%d' % (t0, S_WAVE, t0))
    a('v_lshlrev_b32 v%d, 5, v%d' % (t0, t0))
    a('v_lshl_add_u32 v%d, v%d, 3, v%d' % (t0, c, t0))
    a('v_lshl_add_u32 v%d, v%d, 3, v%d' % (t1, g, r))
    a('v_lshl_add_u32 v%d, v%d, 7, v%d' % (WA, t1, t0))
    for w in (1, 2):
        a('v_add_u32 v%d, %d, v%d' % (XA+2*w, w*65536, XA)); a('v_add_u32 v%d, %d, v%d' % (XA+2*w+1, w*65536, XA+1))
        a('v_add_u32 v%d, %d, v%d' % (WA+w, w*65536, WA))
    a('v_add_u32 v%d, s%d, v%d' % (DA, S_M0W, WA))
    for d in range(1, 4): a('v_xor_b32 v%d, %d, v%d' % (DA+d, d*32, DA))
    for w in (1, 2):
        for d in range(4): a('v_add_u32 v%d, %d, v%d' % (DA+4*w+d, w*65536, DA+d))
    a('s_waitcnt lgkmcnt(0)')
    for b, src, off, sz in ((S_X, 4, T_XO, XB), (S_WG, 6, T_ST, WB), (S_WU, 8, T_ST, WB)):
        a('s_add_u32 s%d, s%d, s%d' % (b, src, off)); a('s_addc_u32 s%d, s%d, 0' % (b+1, src+1))
        a('s_sub_u32 s%d, %d, s%d' % (b+2, sz, off))
    a.stamp('ptrs')
    a('s_cmp_eq_u32 s%d, 1' % T_CLS); a('s_cbranch_scc1 L_cls1')
    a('s_cmp_eq_u32 s%d, 2' % T_CLS); a('s_cbranch_scc1 L_cls2')

def setup_ptrs(a):
    for b, src in ((S_WD, 10), (S_OUT, 12), (S_DBG, 14), (S_H, 16)):
        a('s_mov_b64 s[%d:%d], s[%d:%d]' % (b, b+1, src, src+1))

def setup_late(a, cls):
    l8, p8, m, g, r, c = 2, 3, 4, 5, 6, 7
    t0, t1, t2 = ET, ET+1, ET+2
    for q in range(2): a('v_add_u32 v%d, s%d, v%d' % (VDD+q, T_DS, VDD+q))
    for q in range(2): a('v_add_u32 v%d, %d, v%d' % (VDD+2+q, 16*1280, VDD+q))
    a('v_and_b32 v%d, 1, v%d' % (t0, g))
    a('v_mul_u32_u24 v%d, 55296, v%d' % (t0, t0))
    a('v_lshrrev_b32 v%d, 1, v%d' % (t1, g))
    a('v_lshl_add_u32 v%d, v%d, 8, v%d' % (t0, t1, t0))
    a('v_lshl_add_u32 v%d, v%d, 4, v%d' % (t0, m, t0))
    a('s_lshl_b32 s%d, s%d, 9' % (S_T0, S_WAVE)); a('s_add_u32 s%d, s%d, s%d' % (S_T0, S_T0, T_HO))
    a('v_add_u32 v%d, s%d, v%d' % (VH, S_T0, t0))
    a('s_mul_i32 s%d, s%d, 14336' % (S_T0, S_WAVE))
    a('v_lshlrev_b32 v%d, 4, v0' % t0)
    a('v_add_u32 v%d, s%d, v%d' % (VHL, S_T0, t0))
    a('v_add_u32 v%d, s%d, v%d' % (VRD, S_M0X, t0))
    a('s_cmp_eq_u32 s%d, 3' % S_WAVE)
    a('s_cselect_b32 s%d, 5, 6' % S_T1)
    a('s_movk_i32 s%d, 14336' % S_HL); a('s_cselect_b32 s%d, 12288, s%d' % (S_HL, S_HL))
    a('s_lshl_b32 s%d, s%d, 10' % (S_T0, T_DR))
    for j in range(14):
        a('s_cmp_ge_u32 s%d, s%d' % (S_T0, S_HL)); a('s_cselect_b32 s%d, 0x2000000, s%d' % (S_JO+j, S_T0))
        if j < 13:
            a('s_add_u32 s%d, s%d, 1024' % (S_T0, S_T0)); a('s_cmp_eq_u32 s%d, 14336' % S_T0); a('s_cselect_b32 s%d, 0, s%d' % (S_T0, S_T0))
    a('v_mul_u32_u24 v%d, 1280, v%d' % (t0, m))
    a('v_lshl_add_u32 v%d, v%d, 4, v%d' % (t0, t1, t0))
    a('s_lshl_b32 s%d, s%d, 5' % (S_T0, S_WAVE)); a('s_add_u32 s%d, s%d, s%d' % (S_T0, S_T0, T_DS))
    a('v_add_u32 v%d, s%d, v%d' % (VO, S_T0, t0))
    a('v_mov_b32 v%d, s%d' % (t0, T_U))
    for i in range(1, 6):
        a('v_cmp_eq_u32 vcc, %d, v%d' % (i, l8))
        a('v_mov_b32 v%d, s%d' % (t2, T_U+i)); a('s_nop 0')
        a('v_cndmask_b32 v%d, v%d, v%d, vcc' % (t0, t0, t2))
    a('v_lshrrev_b32 v%d, 1, v%d' % (t0, t0))
    a('v_mul_u32_u24 v%d, 37, v%d' % (t2, t0))
    a('v_lshrrev_b32 v%d, 8, v%d' % (t2, t2))
    a('v_mul_u32_u24 v%d, 7, v%d' % (VPT, t2))
    a('v_sub_u32 v%d, v%d, v%d' % (VPT, t0, VPT))
    a('v_mul_u32_u24 v%d, 27, v%d' % (t2, t2))
    a('v_min_u32 v%d, s%d, v%d' % (t0, S_T1, p8))
    a('s_mul_i32 s%d, s%d, 7' % (S_T0, S_WAVE))
    a('v_add3_u32 v%d, v%d, v%d, s%d' % (t0, t0, t2, S_T0))
    a('v_lshlrev_b32 v%d, 7, v%d' % (t0, t0))
    a('v_add_u32 v%d, %d, v%d' % (VPA, FLAG0, t0))
    a('s_add_u32 s%d, s%d, %d' % (T_FL, T_FL, FLAG0))
    a('s_lshl_b32 s%d, s%d, 2' % (S_T0, S_WAVE)); a('s_add_u32 s%d, s%d, s%d' % (T_FL, T_FL, S_T0))

XCOLD = [1, 6, 8]

def gen_class(a, cls):
    name = 'c%d' % cls
    nblk, nstrip, nun = ((7, 1, 5), (1, 2, 6), (1, 3, 5))[cls]
    A = P.A if cls == 0 else 1
    retain = A < nblk
    NPUB = nblk*nstrip
    lds = Lds()
    nacc = A*nstrip
    dd = [('a', 160+16*i, 0) for i in range(6)] + [('v', 220, 0), ('v', 236, 0)]
    if not retain: dd.append(('a', 144, 0))
    dd += [('v', acc1(b), 0) for b in range(NPUB, 5)] + [('v', acc1(b), b+1) for b in range(min(NPUB, 5))]
    if retain: dd.append(('a', 144, 99))
    assert len(dd) == 14
    def dreg(j, o, n): return vr(dd[j][1] + o, n, dd[j][0])
    stream = []
    for s in range(10):
        for st in range(nstrip):
            for ks in range(2):
                for mat in range(2): stream.append([('W', st, s, ks, mat), P.PACE, P.LLAT])
            if st == 0:
                for b in range(A): stream.append([('X', b, s), P.PACE, P.LLAT])
    nA = len(stream)
    Dt = [('D', j, q) for j in range(14) for q in range(4)]
    if retain:
        cold = XCOLD if P.XC else []
        for b in range(A, nblk):
            pass
        stream += [[('X', b, s), P.PXC, P.CLAT] for s in cold for b in range(A, nblk)]
        rest = [[('X', b, s), P.PXR, P.LLAT] for b in range(A, nblk) for s in range(10) if s not in cold]
        nb = P.XPRE*(10 - len(cold))
        rest[0][1] = P.XPAUSE
        stream += rest[:nb]
        stream += [[t, P.PDC, P.CLAT] for t in Dt[:P.DC]]
        l = rest[nb:] + [[t, -P.PHIT, P.LLAT] for t in Dt[P.DC:]]
        l[0][1] = P.PAUSE; stream += l
    else:
        for i, t in enumerate(Dt):
            stream.append([t, P.PACE if cls else P.PDC if i < P.DC else (P.PAUSE if i == P.DC else -P.PHIT), P.CLAT if i < P.DC else P.LLAT])
    tiles = [x[0] for x in stream]
    lastX = max(i for i, t in enumerate(tiles) if t[0] != 'D')
    dst = dict(next=0, avail=0, rel=[], relb=[])
    st8 = dict(pos=0, last=-10000, kw=None, armed=None, limit=0, kxn=0, slow=0, epi=False)
    def need_kx(s):
        while st8['kxn'] <= s:
            i = st8['kxn']
            a('s_bfe_u32 s%d, s%d, 0x%x' % (S_KX+i, T_K0 if i < 8 else T_K1, (4 << 16) | (4*(i % 8))))
            a('s_lshl_b32 s%d, s%d, 7' % (S_KX+i, S_KX+i))
            st8['kxn'] += 1
    def can_arm():
        if st8['armed'] or st8['pos'] >= min(len(stream), st8['limit']): return False
        t = tiles[st8['pos']]
        if st8['pos'] > lastX: lds.close()
        if t[0] == 'D':
            if t[2] != 0: return True
            return bool(dst['relb']) or len(lds.free) > 0
        return lds.can(False)
    def arm():
        t, _, lat = stream[st8['pos']]; st8['pos'] += 1
        if t[0] == 'W':
            _, st, s, ks, mat = t
            if st8['kw'] != (st, s):
                need_kx(s)
                a('s_mul_i32 s%d, s%d, 1728' % (S_KW, S_KX+s))
                if st: a('s_add_u32 s%d, s%d, %d' % (S_KW, S_KW, st*128))
                st8['kw'] = (st, s)
            lds.alloc(t, False)
            a('s_add_u32 m0, s%d, %d' % (S_M0X, lds.addr[t]))
            ins = 'buffer_load_dwordx4 v%d, %s, s%d offen lds' % (VWD+ks, sr(S_WU if mat else S_WG), S_KW)
        elif t[0] == 'X':
            _, b, s = t
            need_kx(s); lds.alloc(t, False)
            a('s_add_u32 m0, s%d, %d' % (S_M0X, lds.addr[t]))
            ins = 'buffer_load_dwordx4 v%d, %s, s%d offen lds' % (VXD+b, sr(S_X), S_KX+s)
        else:
            _, j, q = t
            if q == 0:
                if dst['relb']:
                    lds.release(('D', dst['relb'].pop(0))); lds.free.insert(0, lds.free.pop())
                lds.alloc(('D', j), True); a('s_mul_i32 s%d, s%d, 40' % (S_DO, S_JO+j))
            a('s_add_u32 m0, s%d, %d' % (S_M0W, lds.addr[('D', j)] + q*1024))
            ins = 'buffer_load_dwordx4 v%d, %s, s%d offen lds' % (VDD+q, sr(S_WD), S_DO)
        st8['armed'] = (ins, t, lat)
    fired = set()
    def fire():
        ins, t, lat = st8['armed']; st8['armed'] = None
        a.vmem(ins, t, lat, 30 if st8['epi'] else 4); st8['last'] = a.t; fired.add(t)
    def flush_armed():
        if st8['armed']: a('s_nop 0'); fire()
    def dma_now(n=1):
        flush_armed()
        for _ in range(n):
            assert can_arm(), (st8, lds.free, lds.live)
            arm(); a('s_nop 0'); fire()
    def pace():
        g = stream[st8['pos']][1]
        if g > 0: return g
        g = -g
        if a.t < st8['slow']: g = max(g, P.PSLOW)
        if st8['epi']: g = max(g, P.EPACE)
        return g
    rq = []; dq = []; nst = [0]
    def d_release():
        for j in list(dst['rel']):
            if ('dr', j) not in a.lg:
                dst['rel'].remove(j)
                if st8['pos'] > lastX: lds.release(('D', j))
                else: dst['relb'].append(j)
    def d_try(force=False):
        d_release()
        j = dst['next']
        if dq or j >= 14 or dd[j][2] > max(dst['avail'], nst[0]) or ('D', j, 3) not in fired: return
        if not force and a.vm_ready(('D', j, 3)) > a.t: return
        ad = lds.addr[('D', j)]; w = ad//65536
        dq.append(lambda: a.wait(vm=('D', j, 3)))
        for d in range(4):
            for t in range(2):
                def f(d=d, t=t):
                    a.lds('ds_read_b64_tr_b16 %s, v%d offset:%d' % (dreg(j, d*4 + t*2, 2), DA+4*w+d, ad - w*65536 + t*512), ('dr', j))
                    if d == 3 and t == 1: dst['rel'].append(j)
                dq.append(f)
        dst['next'] += 1
    pubs = [int(c) for c in str(P.PUBS)] if P.PUBS else sorted(set([2, A] + list(range(A, 8))))
    pub = dict(done=0, stores=[], tg=(pubs if cls == 0 else [nstrip]))
    def flag_atomic(val):
        a('s_mov_b32 s%d, %d' % (S_FV, val))
        for st in range(nstrip):
            a('s_atomic_umax s%d, s[%d:%d], s%d%s' % (S_FV, S_H, S_H+1, T_FL, ' offset:%d' % (128*st) if st else ''))
    def pub_try(force=False):
        if not pub['tg']: return False
        ok = [cnt for cnt in pub['stores'] if a.vm_ready(('hs', cnt)) <= a.t or force]
        if not ok or max(ok) < pub['tg'][0]: return False
        c = max(ok)
        a.wait(vm=('hs', c))
        if c == NPUB and (P.LASTAT or cls):
            if a.lg: a.wait(lg='all')
            flag_atomic(c if cls == 0 else 1); a.sm = a.t + P.ALAT
        else:
            a('v_mov_b32 v1, %d' % c)
            a.vmem('buffer_atomic_umax v1, v%d, %s, s%d offen sc1' % (VGO, sr(S_H), T_FL), 'flag', P.SLAT)
            st8['slow'] = max(st8['slow'], a.t + P.SLAT//2)
        pub['done'] = c; pub['stores'] = [x for x in pub['stores'] if x > c]
        pub['tg'] = [x for x in pub['tg'] if x > c]
        a.raw('; publish %d est %d' % (c, a.t))
        return True
    def gap(budget=2):
        n = 0
        if st8['armed']: fire(); n += 1
        while rq and n < budget and (n == 0 or len(rq) > 3): rq.pop(0)(); n += 1
        if n < budget and can_arm() and a.t - st8['last'] >= pace() - 20: arm(); n += 1
        if n == 0 and pub_try(): return
        if n < budget:
            d_try()
            if dq: dq.pop(0)(); n += 1
    phases = []
    for s in range(10):
        gs = []; wt = []
        for st in range(nstrip):
            if retain: wr = lambda mat, ks, s=s: (2*s+ks)*8 + mat*4
            else: wr = lambda mat, ks, st=st, s=s: ((s % 2)*nstrip + st)*16 + ks*8 + mat*4
            wt += [(('W', st, s, ks, mat), wr(mat, ks)) for mat in range(2) for ks in range(2)]
            for b in range(A):
                for h in range(2):
                    gs.append(dict(acc=acc1(st*A + b) + h*8, wr=wr, x=('X', b, s), h=h, first=(s == 0), w=(st, s), rev=False))
        phases.append(dict(g=gs, wt=wt, xt=[('X', b, s) for b in range(A)], epi=None))
    phases[-1]['epi'] = [(acc1(i), i*110592 if cls == 0 else i*2048) for i in range(nacc)]
    def bphase(bl, ss, first):
        gs = []
        for b in bl:
            for h in range(2):
                for i, s in enumerate(ss):
                    gs.append(dict(acc=acc1(b) + h*8, wr=(lambda mat, ks, s=s: (2*s+ks)*8 + mat*4), x=('X', b, s), h=h,
                                   first=(first and i == 0), w=None, rev=(i % 2 == 1)))
        phases.append(dict(g=gs, wt=[], xt=[('X', b, s) for b in bl for s in ss], epi=None))
    if retain:
        if cold: bphase(range(A, nblk), cold, True)
        for b in range(A, nblk):
            so = [s for s in range(10) if s not in cold]
            if cold: bphase([b], so, False)
            else: bphase([b], so[:5], True); bphase([b], so[5:], False)
            phases[-1]['epi'] = [(acc1(b), b*110592)]
    gi = 0
    for ph in phases:
        for g in ph['g']: g['id'] = gi; gi += 1
        ph['tiles'] = [t for t, _ in ph['wt']] + ph['xt']
        ph['end'] = max(tiles.index(t) for t in ph['tiles']) + 1
    def xread(g, ks):
        ad = lds.addr[g['x']] + g['h']*2048; w = ad//65536
        a.lds('ds_read_b128 %s, v%d offset:%d' % (vr(XR + (g['id'] % RING)*8 + ks*4), XA+2*w+ks, ad - w*65536), ('x', g['id'], ks))
    def wread(t, reg, tt):
        ad = lds.addr[t]; w = ad//65536
        a.lds('ds_read_b64_tr_b16 %s, v%d offset:%d' % (vr(reg + tt*2, 2, 'a'), WA+w, ad - w*65536 + tt*512), t + (tt,))
    def head_reads(ph, nx):
        q = []
        xs = [(g, ks) for g in ph['g'][:nx] for ks in range(2)]
        for i, (t, reg) in enumerate(ph['wt']):
            q += [lambda t=t, reg=reg: wread(t, reg, 0), lambda t=t, reg=reg: wread(t, reg, 1)]
            if i < 2 or i == 3:
                for _ in range(1 if i < 2 else 2):
                    if xs: g, ks = xs.pop(0); q.append(lambda g=g, ks=ks: xread(g, ks))
        q += [lambda g=g, ks=ks: xread(g, ks) for g, ks in xs]
        return q
    def barrier(vm_tags):
        flush_armed()
        a.wait(vm=list(vm_tags), lg='all')
        d_release()
        a('s_barrier')
        for j in dst['relb']: lds.release(('D', j))
        dst['relb'] = []
    slow = []
    def check_go():
        a.wait(vm='go')
        lab = 'L_go_%s' % name
        a('v_readfirstlane_b32 s%d, v%d' % (S_T0, VGO))
        a('v_lshlrev_b32 v%d, 24, v0' % VGO)
        a('s_cmp_eq_u32 s%d, 0' % S_T0); a('s_cbranch_scc1 %ss' % lab)
        a.label(lab)
        def emit():
            a.label(lab + 's')
            a('s_mov_b32 s%d, 0' % S_SPIN)
            a.label(lab + 'w')
            a('s_sleep 2')
            a('buffer_load_dword v1, v%d, %s, 0 offen sc1' % (VZ, sr(S_DBG)))
            a('s_waitcnt vmcnt(0)')
            a('v_readfirstlane_b32 s%d, v1' % S_T0)
            a('s_add_u32 s%d, s%d, 1' % (S_SPIN, S_SPIN)); a('s_cmp_gt_u32 s%d, 0x80000' % S_SPIN); a('s_cbranch_scc1 %s' % lab)
            a('s_cmp_eq_u32 s%d, 0' % S_T0); a('s_cbranch_scc1 %sw' % lab)
            a('s_branch %s' % lab)
        slow.append(emit)
    def epilogue(items, tailq):
        st8['epi'] = True
        a('s_nop 7' if len(items) == 1 else 's_nop 1')
        for n, (ab, hoff) in enumerate(items):
            T = ET
            G = [ab + h*8 + 2*p for h in range(2) for p in range(2)]
            def em(t, c=4): a(t, c); gap(1)
            for i in range(4): em('v_pk_mul_f32 %s, %s, %s' % (vr(T+2*i, 2), vr(G[i], 2), vr(G[i], 2)))
            for i in range(4): em('v_pk_fma_f32 %s, %s, s[%d:%d], s[%d:%d] op_sel:[0,0,1] op_sel_hi:[1,0,1]' % (vr(T+2*i, 2), vr(T+2*i, 2), S_C, S_C+1, S_C, S_C+1))
            for i in range(4): em('v_pk_mul_f32 %s, %s, %s' % (vr(T+2*i, 2), vr(T+2*i, 2), vr(G[i], 2)))
            for i in range(8): em('v_exp_f32 v%d, v%d' % (T+i, T+i), 8)
            for i in range(4): em('v_pk_add_f32 %s, %s, 1.0 op_sel_hi:[1,0]' % (vr(T+2*i, 2), vr(T+2*i, 2)))
            for i in range(8): em('v_rcp_f32 v%d, v%d' % (T+i, T+i), 8)
            if n == len(items)-1: rq.extend(tailq)
            for i in range(4): em('v_pk_mul_f32 %s, %s, %s' % (vr(T+2*i, 2), vr(T+2*i, 2), vr(G[i], 2)))
            for i in range(4): em('v_pk_mul_f32 %s, %s, %s' % (vr(T+2*i, 2), vr(T+2*i, 2), vr(G[i]+4, 2)))
            for i in range(4): em('v_cvt_pk_bf16_f32 v%d, v%d, v%d' % (ab+i, T+2*i, T+2*i+1))
            flush_armed()
            a('s_mov_b32 s%d, %d' % (S_HO, hoff)); a('s_nop 0')
            a('v_permlane16_swap_b32 v%d, v%d' % (ab, ab+2))
            a('v_permlane16_swap_b32 v%d, v%d' % (ab+1, ab+3))
            nst[0] += 1
            a.vmem('buffer_store_dwordx4 %s, v%d, %s, s%d offen sc1' % (vr(ab), VH, sr(S_H), S_HO), ('hs', nst[0]), P.SLAT, 20)
            pub['stores'].append(nst[0]); st8['slow'] = a.t + P.SLAT
        st8['epi'] = False
    PL = 'buffer_load_dwordx4 v[4:7], v%d, %s, 0 offen sc1' % (VPA, sr(S_H))
    def rdy_test(u): return ['s_bfe_u32 s%d, s%d, 0x%x' % (S_T0, S_RDY + u//4, (8 << 16) | ((u % 4)*8)), 's_cmp_eq_u32 s%d, 0xff' % S_T0]
    def poll_issue(u=None):
        if u is None:
            a('s_mov_b64 %s, 0' % sr(S_RDY, 2)); a.vmem(PL, 'poll', P.LLAT); return
        for t in rdy_test(u): a(t)
        a('s_cselect_b32 s%d, 0x40000000, 0' % S_T1)
        a.vmem('buffer_load_dwordx4 v[4:7], v%d, %s, s%d offen sc1' % (VPA, sr(S_H), S_T1), 'poll', P.LLAT)
    def poll_eval():
        a('v_min_u32 v4, v4, v5'); a('v_min3_u32 v4, v4, v6, v7')
        a('v_cmp_gt_u32 vcc, v4, v%d' % VPT); a('s_nop 0'); a('s_or_b64 %s, %s, vcc' % (sr(S_RDY, 2), sr(S_RDY, 2)))
    def need_unit(u):
        lab = 'L_nu_%s_%d' % (name, u)
        tst = rdy_test(u)
        for t in tst: a(t)
        a('s_cbranch_scc0 %ss' % lab)
        a.label(lab)
        pend = pub['done'] < NPUB
        assert nst[0] == NPUB
        def emit():
            a.label(lab + 's')
            a('s_mov_b32 s%d, 0' % S_SPIN)
            if pend:
                a('s_waitcnt vmcnt(0) lgkmcnt(0)'); flag_atomic(NPUB if cls == 0 else 1)
            a.label(lab + 'w')
            a('s_lshl_b64 exec, 0xff, %d' % (8*u)); a(PL); a('s_mov_b64 exec, -1'); a('s_waitcnt vmcnt(0) lgkmcnt(0)'); poll_eval()
            for t in tst: a(t)
            a('s_cbranch_scc1 %s' % lab)
            if P.SLEEP: a('s_sleep %d' % P.SLEEP)
            a('s_add_u32 s%d, s%d, 1' % (S_SPIN, S_SPIN)); a('s_cmp_gt_u32 s%d, 0x80000' % S_SPIN); a('s_cbranch_scc0 %sw' % lab)
            a('s_branch %s' % lab)
        slow.append(emit)
    def set_limit(i):
        if i+1 >= len(phases) or phases[i+1]['end'] + P.LOOK >= nA + (9 if retain else 0): st8['limit'] = len(stream); return
        st8['limit'] = phases[i+1]['end'] + P.LOOK
    def pfcode(nm):
        a('s_add_u32 s92, s18, L_code_%s-L_pc' % nm); a('s_addc_u32 s93, s19, 0')
        a('s_mov_b32 s94, L_codeend_%s-L_code_%s' % (nm, nm)); a('s_mov_b32 s95, 0x20000')
        a.vmem('buffer_load_dword v253, v%d, s[92:95], 0 offen' % VPR, 'pf', P.LLAT)

    if cls: a.label('L_cls%d' % cls)
    if cls == 2:
        setup_ptrs(a)
        for i in range(4): a('v_mov_b32 v%d, 0' % (108+i))
        a('s_mov_b32 s%d, %d' % (S_T0, FLAG0)); a('s_mov_b32 s%d, %d' % (S_T1, FLAG0 + 256*128))
        a.vmem('buffer_store_dwordx4 %s, v%d, %s, s%d offen sc1' % (vr(108), VPR, sr(S_H), S_T0), 'rst', P.SLAT)
        a.vmem('buffer_store_dwordx4 %s, v%d, %s, s%d offen sc1' % (vr(108), VPR, sr(S_H), S_T1), 'rst', P.SLAT)
    if P.PFCODE == 2 and cls: pfcode('c0')
    st8['limit'] = phases[0]['end']; dma_now(phases[0]['end'])
    if P.PFCODE == 1 or (P.PFCODE == 2 and cls): pfcode(name)
    a('s_barrier')
    st8['limit'] = len(stream)
    dma_now(max(0, min(12, P.PRO) - st8['pos']))
    if cls != 2: setup_ptrs(a)
    setup_late(a, cls)
    a.label('L_code_%s' % name)
    def spf():
        a('s_lshl_b32 s%d, s%d, 7' % (S_T0, S_WAVE))
        if retain and P.SPF & 1:
            nx = -(-(nblk-A)*320//(27*4))
            a('s_mul_i32 s%d, s%d, %d' % (S_T1, T_ST, nx*4)); a('s_add_u32 s%d, s%d, s%d' % (S_T1, S_T1, S_T0))
            for n in range(nx): a('s_buffer_load_dword s%d, %s, s%d offset:%d' % (S_SPIN, sr(S_X), S_T1, A*40960 + n*512))
        if P.SPF & 2:
            a('s_mul_i32 s%d, s2, 8704' % S_HO); a('s_add_u32 s%d, s%d, s%d' % (S_HO, S_HO, S_T0))
            for n in range(17): a('s_buffer_load_dword s%d, %s, s%d offset:%d' % (S_SPIN, sr(S_WD), S_HO, n*512))
        a.sm = 0
    if P.TOUCH:
        a('v_lshlrev_b32 v252, 20, v0')
        for srd in (S_WD, S_OUT, S_H): a.vmem('buffer_load_dword v253, v252, %s, 0 offen' % sr(srd), 'pf', P.LLAT)
    if P.SPF and P.SPFAT == 0: spf()
    dma_now(max(0, max(P.PRO, phases[0]['end'] + 5) - st8['pos']))
    if P.SPF and P.SPFAT == 1: spf()
    barrier(phases[0]['tiles'] + ['rst'])
    if cls == 2:
        a('v_mov_b32 v1, 1'); a('s_mov_b64 exec, 1')
        a.vmem('buffer_store_dword v1, v%d, %s, s%d offen sc1' % (VZ, sr(S_DBG), S_M0X), 'gost', P.SLAT)
        a('s_mov_b64 exec, -1')
    a.stamp('ph0')
    a.t = 0; a.mf = -100; st8['last'] = -10000
    a.vm = [(x, 600) for x, _ in a.vm]
    D = P.D
    for f in head_reads(phases[0], D): f()
    nxt = D
    set_limit(0)
    for pi, ph in enumerate(phases):
        gs = ph['g']; ng = len(gs)
        nph = phases[pi+1] if pi+1 < len(phases) else None
        if pi == 4: a.vmem('buffer_load_dword v%d, v%d, %s, 0 offen sc1' % (VGO, VZ, sr(S_DBG)), 'go', P.LLAT)
        BU = max(ng - 4, 0)
        seen = set()
        for u, g in enumerate(gs):
            while nxt < ng and nxt <= u + D:
                rq.extend([lambda g2=gs[nxt]: xread(g2, 0), lambda g2=gs[nxt]: xread(g2, 1)]); nxt += 1
            xb = XR + (g['id'] % RING)*8
            order = ((1,0),(1,1),(0,0),(0,1)) if g['rev'] else ((0,0),(0,1),(1,0),(1,1))
            for i, (mat, ks) in enumerate(order):
                need = [('x', g['id'], ks)]
                if i == 0 and (not g['w'] or g['w'] in seen): need.append(('x', g['id'], 1))
                if g['w'] and g['w'] not in seen: need += [('W',) + g['w'] + (ks, mat, tt) for tt in range(2)]
                while any(n not in a.issued for n in need): rq.pop(0)()
                a.wait(lg=need)
                c = '0' if (g['first'] and ks == 0) else vr(g['acc'] + mat*4)
                a.mfma(vr(g['acc'] + mat*4), vr(g['wr'](mat, ks), 4, 'a'), vr(xb + ks*4), c)
                gap()
            if g['w']: seen.add(g['w'])
            late = ph['epi'] is not None and nph is not None
            if u == BU and not (late and pi == 9):
                while rq: rq.pop(0)()
                assert nxt == ng
                if nph:
                    flush_armed()
                    while st8['pos'] < nph['end']: dma_now()
                    while st8['pos'] < min(nph['end'] + P.TOP, nA if cls == 0 else 999) and can_arm(): dma_now()
                if pi == 8: check_go()
                barrier(nph['tiles'] if nph else [])
                for t in ph['tiles']: lds.release(t)
                set_limit(pi+1)
                a.stamp('b%d' % (pi+1), lvl=2)
                if nph and not late: rq.extend(head_reads(nph, 2))
        if ph['epi'] is not None:
            a.stamp('m%d' % pi)
            if nph is None and retain: dd[13] = dd[13][:2] + (0,)
            if pi == 9 and nph:
                barrier([])
                for t in ph['tiles']: lds.release(t)
                set_limit(pi+1)
                epilogue(ph['epi'][:-1], [])
                flush_armed()
                while st8['pos'] < nph['end']: dma_now()
                barrier(nph['tiles'])
                a('s_nop 0')
                epilogue(ph['epi'][-1:], head_reads(nph, D))
            else:
                if nph is None and cls == 0 and retain: poll_issue()
                epilogue(ph['epi'], head_reads(nph, D) if nph else [])
            while rq: rq.pop(0)()
            nxt = D
            a.stamp('e%d' % pi)
        else:
            nxt = 2
    dst['avail'] = 99
    flush_armed()
    a.raw('; D tiles left at P1 end: %d, next read group %d' % (len(stream) - st8['pos'], dst['next']))
    def hreg(u, j): p, b = HB3[u % 3]; return vr(b + 4*j, 4, p)
    hq = []
    for u in range(nun):
        def ctl(u=u):
            a.wait(vm='poll'); poll_eval(); need_unit(u)
            a('s_mul_i32 s%d, s%d, 55296' % (S_HL, T_U+u)); a('v_add_u32 v%d, s%d, v%d' % (VHT, S_HL, VHL))
            a.stamp('n%d' % u, lvl=2)
        hq.append((u, -1, ctl))
        for j in range(14):
            if j == 14 - P.POLLB and u < nun-1: hq.append((u, j, lambda u=u: poll_issue(u+1)))
            hq.append((u, j, lambda u=u, j=j: a.vmem('buffer_load_dwordx4 %s, v%d, %s, s%d offen sc1' % (hreg(u, j), VHT, sr(S_H), S_JO+j), ('h', u, j), P.LLAT)))
    prog = [0, 0, 4 + P.LA]
    def h_pop(n=1):
        for _ in range(n):
            if hq and (hq[0][0]-3, hq[0][1]) < (prog[0], prog[1]) and 14*hq[0][0] + hq[0][1] < prog[2]: hq.pop(0)[2]()
    polled = [cls == 0 and retain]
    def d_step():
        while dq: dq.pop(0)()
        if st8['pos'] >= len(stream): return False
        if not polled[0] and pub['done'] == NPUB and len(stream) - st8['pos'] <= P.POLLB: poll_issue(); polled[0] = True
        if can_arm(): dma_now(); return True
        d_try()
        if dq: return True
        if dst['rel']: a.wait(lg='all'); d_release(); return True
        d_try(True); assert dq
        return True
    k = 0
    while k < P.PREH:
        pub_try()
        n0 = len(a.vm)
        if not d_step():
            if not polled[0]: break
            h_pop()
        k += max(0, len(a.vm) - n0) if len(a.vm) != n0 else 0
        if not hq or 14*hq[0][0] + hq[0][1] >= prog[2]: break
    while True:
        d_try()
        if not dq: break
        while dq: dq.pop(0)()
    pub_try(True)
    assert pub['done'] == NPUB
    a.stamp('pub')
    while d_step(): pass
    if not polled[0]: poll_issue()
    a.stamp('dissued', lvl=2)
    while dst['next'] < 14 or dq:
        d_try()
        if not dq:
            if hq and 14*hq[0][0] + hq[0][1] < prog[2]: h_pop(); continue
            d_try(True)
        while dq: dq.pop(0)()
    a.wait(lg='all')
    a.stamp('dread')
    for d in range(1, 4): a('v_xor_b32 v%d, %d, v%d' % (DA+d, d*1024, VRD))
    for d in range(0, 4): a('v_add_u32 v%d, 65536, v%d' % (DA+4+d, DA+d if d else VRD))
    a('v_bfe_u32 v%d, v0, 4, 1' % (DA+8))
    def acc2(u, d): return vr(OWN + 4*u) if d == 0 else vr(ACC2 + (u % 2)*12 + (d-1)*4, 4, 'a')
    def red_write(u, d):
        off = (u*3 + d-1)*4096
        a.lds('ds_write_b128 v%d, %s offset:%d' % (DA + d + 4*(off//65536), acc2(u, d), off % 65536), ('rw', u))
    def red_items(u0, u1, q):
        us = [u0] + ([u1] if u1 is not None else [])
        it = []
        for n, u in enumerate(us):
            for d in range(1, 4):
                off = (u*3 + d-1)*4096
                it.append(lambda n=n, u=u, d=d, off=off: a.lds('ds_read_b128 %s, v%d offset:%d' % (vr(RT + 12*n + 4*(d-1)), VRD if off < 65536 else DA+4, off % 65536), ('rr', u)))
        S0, S1 = S_KW, S_DO
        it.append(lambda: a('s_mov_b32 s%d, s%d' % (S0, T_O0)) if u0 == 0 else a('s_mul_i32 s%d, s%d, 20480' % (S0, T_U+u0)))
        it.append(lambda: a('s_mul_i32 s%d, s%d, 20480' % (S1, T_U+u1)) if u1 is not None else a('s_mov_b32 s%d, 0x40000000' % S1))
        it.append(lambda: a('s_sub_u32 s%d, s%d, s%d' % (S1, S1, S0)))
        it.append(lambda: a('v_mul_lo_u32 v1, v%d, s%d' % (DA+8, S1)))
        it.append(lambda: a('v_add3_u32 v1, v1, v%d, s%d' % (VO, S0)))
        for n, u in enumerate(us):
            o = OWN + 4*u; r = RT + 12*n
            it.append(lambda u=u: a.wait(lg=('rr', u)))
            for i in range(4): it.append(lambda i=i, r=r: a('v_add_f32 v%d, v%d, v%d' % (r+i, r+i, r+4+i)))
            for i in range(4): it.append(lambda i=i, r=r, o=o: a('v_add_f32 v%d, v%d, v%d' % (o+i, o+i, r+8+i)))
            for i in range(4): it.append(lambda i=i, r=r, o=o: a('v_add_f32 v%d, v%d, v%d' % (o+i, o+i, r+i)))
            for p in range(2): it.append(lambda n=n, p=p, o=o: a('v_cvt_pk_bf16_f32 v%d, v%d, v%d' % (q + 2*n + p, o+2*p, o+2*p+1)))
        def fin():
            a('s_nop 1')
            a('v_permlane16_swap_b32 v%d, v%d' % (q, q+2))
            a('v_permlane16_swap_b32 v%d, v%d' % (q+1, q+3))
            a.vmem('buffer_store_dwordx4 %s, v1, %s, 0 offen%s' % (vr(q), sr(S_OUT), ['', ' sc1', ' nt', ' sc0 sc1'][P.OPOL]), 'o', 400)
        it.append(fin)
        return it
    wq = []; red = []
    CH = [(0, 4), (4, 7), (7, 11), (11, 14)]
    for u in range(nun):
        last = u == nun - 1
        for ci, (j0, j1) in enumerate(CH):
            prog[0], prog[1] = u, j0
            while hq and 14*hq[0][0] + hq[0][1] < 14*u + j1 + P.LA: h_pop()
            prog[2] = 14*u + j1 + P.LA + (CH[(ci+1) % 4][1] - CH[(ci+1) % 4][0])
            if u == 1 and ci == 0: a('s_barrier')
            if ci == 1 and u in (2, 4):
                assert not wq and not red
                a.wait(lg='all'); a('s_barrier')
                red = red_items(u-2, u-1, OQ + (u-2)*2)
            a.wait(vm=('h', u, j1-1))
            n = 0
            for d in ((1, 2, 3, 0) if (last and ci == 3) else (0, 1, 2, 3)):
                for j in range(j0, j1):
                    a.mfma(acc2(u, d), dreg(j, d*4, 4), hreg(u, j), '0' if j == 0 else acc2(u, d))
                    n += 1
                    if wq and n >= 9 and n % 2 == 0: wq.pop(0)()
                    elif n % P.HP == 1 and hq: h_pop()
                    else:
                        for _ in range(2):
                            if red: red.pop(0)()
        wq = [lambda u=u, d=d: red_write(u, d) for d in range(1, 4)]
        a.stamp('u%d' % u, lvl=(1 if last or u == 0 else 2))
    while red: red.pop(0)()
    wq.pop(0)(); a('s_nop 1'); wq.pop(0)(); a('s_nop 2'); wq.pop(0)()
    a.wait(lg='all'); a('s_barrier')
    for f in red_items(4, 5 if nun == 6 else None, OQ): f()
    a.stamp('end')
    if P.diag:
        a.wait(vm='all')
        a.stamp('end2', False, 0); a.stamp('end_rt', True, 0)
        a('s_getreg_b32 s98, hwreg(HW_REG_XCC_ID)'); a('v_writelane_b32 v255, s98, 63')
        a('v_writelane_b32 v255, s%d, 62' % T_CLS); a('v_writelane_b32 v255, s%d, 61' % T_K0)
        if P.PROBE >= 0:
            a('s_nop 1'); a('v_readlane_b32 s96, v255, %d' % (P.PROBE if cls == 0 else 0)); a('s_nop 3')
            a('s_add_u32 s96, s96, 4000')
            if P.PWG >= 0:
                a('s_cmp_lg_u32 s2, %d' % P.PWG); a('s_cbranch_scc1 L_end')
            a.label('L_probe_%s' % name)
            a('s_sleep 1'); a('s_memrealtime s[98:99]'); a('s_waitcnt lgkmcnt(0)')
            a('s_sub_u32 s97, s98, s96'); a('s_cmp_lt_i32 s97, 0'); a('s_cbranch_scc1 L_probe_%s' % name)
            a('s_endpgm')
        if P.DBGOUT:
            a('v_readlane_b32 s96, v255, 0'); a('v_readlane_b32 s97, v255, %d' % (a.nstamp-1)); a('s_nop 3')
            a('s_not_b32 s95, s96'); a('v_mov_b32 v2, s97'); a('v_mov_b32 v3, s95'); a('v_mov_b32 v1, 0')
            a('s_mov_b64 exec, 1')
            a('buffer_atomic_umax v2, v1, %s, 0 offen offset:4 sc1' % sr(S_DBG))
            a('buffer_atomic_umax v3, v1, %s, 0 offen offset:8 sc1' % sr(S_DBG))
            a('s_mov_b64 exec, -1')
            a('v_subrev_u32 v2, s96, v255'); a('v_lshlrev_b32 v3, 2, v0')
            a('s_lshl_b32 s95, s2, 2'); a('s_add_u32 s95, s95, s%d' % S_WAVE); a('s_cmp_eq_u32 s95, 404'); a('s_cselect_b32 s95, 4, 0x10000')
            a('s_mov_b64 exec, 0x7ffc')
            a('buffer_store_dword v2, v3, %s, s95 offen' % sr(S_DBG))
            a('s_mov_b64 exec, -1')
        a('s_mov_b32 s%d, 0x4000000' % (S_H+2))
        a('s_lshl_b32 s98, s2, 2'); a('s_add_u32 s98, s98, s%d' % S_WAVE); a('s_lshl_b32 s98, s98, 8')
        a('s_add_u32 s98, s98, %d' % (16 << 20))
        a('v_lshlrev_b32 v254, 2, v0')
        a('buffer_store_dword v255, v254, %s, s98 offen' % sr(S_H))
        a('s_waitcnt vmcnt(0)')
        a.raw('; nstamp %d cls %d' % (a.nstamp, cls))
        if P.diag == 2: a.raw('; realtime stamps')
    a('s_endpgm')
    for f in slow: f()
    a.label('L_codeend_%s' % name)

SCH = {1: [[0,2,1,3,6,4,5,7,8,9], [0,1,4,2,3,8,6,5,9,7], [1,3,0,2,7,5,4,6,8,9], [1,0,5,2,3,9,7,4,6,8]],
       5: [[0,1,2,3,4,5,6,7,8,9]]}
def jobs():
    nspec = [2, 2, 2, 1, 1, 2, 2, 1]
    tiles = [(s, g) for s in range(27) for g in range(9)]
    p1 = {x: [] for x in range(8)}; pos = 0
    for p in range(4):
        n0, n1 = 32 - nspec[2*p], 32 - nspec[2*p+1]
        mine = sorted(tiles[pos:pos+n0+n1], key=lambda t: (t[1], t[0])); pos += n0+n1
        p1[2*p] = [(0,) + t for t in mine[:n0]]; p1[2*p+1] = [(0,) + t for t in mine[n0:]]
    assert pos == 243
    st = 0
    for x in range(8):
        for i in range(nspec[x]):
            c = 2 if (x == 6 and i == 1) else 1
            p1[x].append((c, st, 9)); st += c+1
    assert st == 27
    nmat = [(7,6,7,6), (6,7,6,7), (7,6,6,7), (6,7,6,6), (6,6,7,6)]
    p2 = {}; drot = {}; dupc = set()
    def pos_of(u):
        b = u//2
        return (b % 7) if b < 63 else 3.5
    for half in range(2):
        xs = [2*q + half for q in range(4)]
        avail = {x: [i for i, j in enumerate(p1[x]) if j[0] != 1] for x in xs}
        s2 = [(x, i) for x in xs for i, j in enumerate(p1[x]) if j[0] == 1]
        assert len(s2) == 6, s2
        six = {3: s2[0::2], 4: s2[1::2]}
        for si in range(5):
            ds = 5*half + si
            cus = []
            for q, x in enumerate(xs):
                sp = [i for (xx, i) in six.get(si, []) if xx == x]
                l = [(x, i, 6) for i in sp]
                for _ in range(nmat[si][q] - len(sp)): l.append((x, avail[x].pop(), 5))
                cus.append(l)
            extra = sum(c[2] for l in cus for c in l) - 128
            assert extra in (0, 2)
            u0 = 0
            for q, l in enumerate(cus):
                n = sum(c[2] for c in l)
                dup = 1 if (extra and nmat[si][q] == 7) else 0
                us = list(range(u0, u0 + n - dup)); u0 += n - dup
                us.sort(key=lambda u: (pos_of(u), u))
                if dup: us.insert(0, us[0]); dupc.add((l[0][0], l[0][1]))
                asg = {c: [] for c in l}
                k = 0
                for c in l:
                    if c[2] == 6: asg[c].append(us[k]); k += 1
                for rd in range(5):
                    for c in l: asg[c].append(us[k]); k += 1
                for n_, c in enumerate(l):
                    p2[(c[0], c[1])] = (ds, asg[c]); drot[(c[0], c[1])] = ((n_ + si) % len(l))*14//len(l)
            assert u0 == 128
    recs = []
    sch = SCH[P.SCHED]
    if len(sch) > 1: assert set(o[i] for o in sch for i in XCOLD) == set(range(10))
    for wg in range(256):
        x, i = wg % 8, wg // 8
        c, s, g = p1[x][i]
        blk0 = g*7
        order = sch[(s + g) % len(sch)]
        assert sorted(order) == list(range(10))
        k0 = sum(order[i] << (4*i) for i in range(8)); k1 = order[8] | (order[9] << 4)
        ds, us = p2[(x, i)]
        us = us + [us[-1]]*(6-len(us))
        recs.append((c, blk0*40960, s*128, k0, blk0*110592 + s*2048, (g*27 + s)*128, ds*128, drot[(x, i)]) + tuple(us) + (0x40000000 if (x, i) in dupc else us[0]*20480, k1))
    cover = [(r[6], u) for r in recs for u in r[(9 if r[14] == 0x40000000 else 8):8+(6 if r[0] == 1 else 5)]]
    assert len(cover) == 1280 and len(set(cover)) == 1280
    return recs

def build():
    a = Asm()
    hdr = open('standalone__glu_gated_geglu__prompt.s.ref').read().split('\n')[:8]
    for l in hdr: a.raw(l)
    a.raw('; @launch grid=(256,1,1) block=(256,1,1) lds=163840')
    a.raw('.amdgcn_target "amdgcn-amd-amdhsa--gfx950"'); a.raw('.text')
    a.raw('.globl %s\n.p2align 8\n.type %s,@function' % (KN, KN)); a.label(KN)
    setup_common(a)
    ns = a.nstamp
    for cls in range(3):
        a.reset(); a.nstamp = ns
        gen_class(a, cls)
    a.label('L_end'); a('s_endpgm')
    a.raw('.p2align 6'); a.raw('.type jobtab,@object'); a.label('jobtab')
    for r in jobs(): a.raw('.long ' + ', '.join(str(int(x)) for x in r))
    a.raw('.size jobtab, %d' % (64*256))
    a.raw('''.section .rodata,"a"
.p2align 6
.amdhsa_kernel %s
  .amdhsa_next_free_vgpr 512
  .amdhsa_next_free_sgpr 102
  .amdhsa_accum_offset 256
  .amdhsa_group_segment_fixed_size 0
  .amdhsa_kernarg_size 56
  .amdhsa_user_sgpr_count 2
  .amdhsa_user_sgpr_kernarg_segment_ptr 1
  .amdhsa_system_sgpr_workgroup_id_x 1
  .amdhsa_float_denorm_mode_32 3
.end_amdhsa_kernel''' % KN)
    return '\n'.join(a.L) + '\n'

if __name__ == '__main__':
    out = sys.argv[1]
    for kv in sys.argv[2:]:
        k, v = kv.split('='); assert hasattr(P, k), k; setattr(P, k, int(v))
    txt = build()
    open(out, 'w').write(txt)
```

```python
import sys, math, struct

M, DM, DF = 2048, 640, 1728
XB, WB, OB = M*DM*2, DM*DF*2, M*DM*2
FLAG0 = 8 << 20
WSB = FLAG0 + 270*128
C1 = -2.0*math.sqrt(2.0/math.pi)*math.log2(math.e)
C2 = C1*0.044715
def f2u(x): return struct.unpack('<I', struct.pack('<f', x))[0]
KN = 'standalone__glu_gated_geglu__prompt_kernel'

class P:
    R = 0; SCHED = 1; PACE = 60; LOOK = 12; TOP = 9; PRO = 18; D = 4; PFCODE = 2; diag = 0; STAMPS = 1
    LLAT = 900; DLAT = 1100; SLAT = 1000
    PUBS = 7; POLLB = 9; HP = 3; SLEEP = 4; LA = 12; PREH = 0
    GD = 7; DSTART = 5; PBG = 64; EPACE = 100000; SPF = 0; SPF0 = 1; SPFN = 3; KD = 0; OPOL = 0; ELAG = 1; BPAIR = 2
    SVC = 68; LH = 500; LC = 1200; LC0 = 1500; LDC = 2600; OUT0 = 6; OUT = 10; DC = 8; DAT = 9; MINP = 48; LOOKMAX = 30; ALIGN = 0; DSTOP = 200; REV = 1; KS = 14; NPRE = 22; DR = 2; MID = 0; LA0 = 8; TS = 16; DLY = 0; DLYAT = 3; PDC = 0; TM = 7; TAT = -1; NTC = 0; SHARE = 1; PF2 = 0; POSTD = 0; ELOAD = 0; SB = 1234567; LS = 900; STAG = 0; EOUT = 8; ECOST = 20; DPF = 0; DMAX = 56; LPF = 1400; FAKEH = 0; NOMF = 0
    PROBE = -1; PWG = -1; DBGOUT = 0; TOUCH = 0

SCH = {1: [[0,2,1,3,6,4,5,7,8,9], [0,1,4,2,3,8,6,5,9,7], [1,3,0,2,7,5,4,6,8,9], [1,0,5,2,3,9,7,4,6,8]],
       2: [[0,1,2,3,4,6,5,7,8,9], [0,1,3,4,5,7,2,8,9,6], [1,0,4,5,2,8,3,9,6,7], [1,0,5,2,3,9,4,6,7,8]],
       3: [[0,2,1,6,3,4,5,7,8,9], [0,1,4,2,8,3,6,5,9,7], [1,3,0,7,2,5,4,6,8,9], [1,0,5,2,9,3,7,4,6,8]]}
SCH[4] = [[0,3,1,2,6,4,5,9,7,8], [1,0,4,2,3,7,5,6,8,9], [2,0,1,5,3,4,8,6,7,9]]
SCH[5] = [[0,2,1,5,3,4,8,6,7,9], [0,1,3,2,6,4,5,9,7,8], [1,0,4,2,3,7,5,6,8,9]]
SCH[6] = [[0,2,1,4,3,6,5,8,7,9], [1,0,3,2,5,4,7,6,9,8]]
SCH[7] = [[0,1,2,4,3,5,7,6,8,9], [0,2,3,1,5,4,6,8,7,9], [0,3,1,2,4,6,5,7,9,8]]
SCH[8] = [[0,1,2,3,5,4,7,6,9,8], [0,2,1,4,3,6,5,8,7,9]]
VARS = {7: [[0,1,3,6], [0,1,4,7], [0,1,5,8]], 8: [[0,1,3,4,6,8], [0,1,3,5,7]], 4: [[0,1,4,7], [0,2,5], [0,3,6]], 5: [[0,1,3,6], [0,2,4,7], [0,2,5]], 6: [[0,1,3,5,7], [0,2,4,6,8]], 1: [[0,1,4], [0,2,5]], 2: [[0,2,5]], 3: [[0,1,3], [0,2,4]]}
VMAP = {7: [0,1,2], 8: [0,1], 4: [0,1,2], 5: [0,1,2], 6: [0,1], 1: [0,1,0,1], 2: [0,0,0,0], 3: [0,1,0,1]}

class Asm:
    def __init__(s):
        s.L = []; s.reset()
    def reset(s):
        s.vm = []; s.lg = []; s.nstamp = 0; s.t = 0; s.mf = -100; s.sm = None; s.issued = set()
    def __call__(s, t, c=4): s.L.append('    ' + t); s.t += c
    def label(s, t): s.L.append(t + ':')
    def raw(s, t): s.L.append(t)
    def mfma(s, d, a_, b, c):
        s.t = max(s.t, s.mf + 16); s.mf = s.t
        s('v_mfma_f32_16x16x32_bf16 %s, %s, %s, %s' % (d, a_, b, c), 8)
    def vmem(s, t, tag, lat, c=4):
        s(t, c); prev = s.vm[-1][1] if s.vm else 0
        s.vm.append((tag, max(prev, s.t + lat)))
    def lds(s, t, tag): s(t); s.lg.append(tag); s.issued.add(tag)
    def vm_ready(s, tag):
        r = 0
        for x, t in s.vm:
            if x == tag: r = t
        return r
    def wait(s, vm=None, lg=None):
        parts = []
        if vm is not None:
            if vm == 'all': n = 0 if s.vm else None
            else:
                tags = vm if isinstance(vm, list) else [vm]
                idx = max([i for i, x in enumerate(s.vm) if x[0] in tags], default=-1)
                n = None if idx < 0 else len(s.vm) - 1 - idx
            if n is not None:
                n = min(n, 63); parts.append('vmcnt(%d)' % n)
                s.t = max(s.t, s.vm[len(s.vm)-1-n][1])
                s.vm = s.vm[len(s.vm)-n:] if n else []
        if lg is not None:
            if lg == 'all': n = 0 if s.lg else None
            else:
                tags = lg if isinstance(lg, list) else [lg]
                idx = max([i for i, x in enumerate(s.lg) if x in tags], default=-1)
                n = None if idx < 0 else len(s.lg) - 1 - idx
            if n is not None:
                n = min(n, 15); parts.append('lgkmcnt(%d)' % n); s.lg = s.lg[len(s.lg)-n:] if n else []
        if parts: s('s_waitcnt ' + ' '.join(parts))
    def stamp(s, name='', real=False, lvl=1):
        if not P.diag or lvl > P.STAMPS:
            s.raw('; mark %s est %d' % (name, s.t)); return
        s('%s s[98:99]' % ('s_memrealtime' if (real or (P.diag == 2 and name not in ('entry', 'end2'))) else 's_memtime'), 0); s('s_waitcnt lgkmcnt(0)', 0)
        s('v_writelane_b32 v255, s98, %d' % s.nstamp, 0)
        s.raw('; stamp %d %s est %d' % (s.nstamp, name, s.t)); s.nstamp += 1

def vr(b, n=4, p='v'): return '%s[%d:%d]' % (p, b, b+n-1)
def sr(b, n=4): return 's[%d:%d]' % (b, b+n-1)

S_X, S_WG, S_WU, S_WD, S_OUT, S_H, S_DBG = 20, 24, 28, 32, 36, 40, 44
S_WAVE, S_M0X, S_M0W, S_KW, S_T0, S_T1, S_HO, S_DO, S_HL, S_FV = 48, 49, 50, 51, 52, 53, 54, 55, 56, 57
S_RDY = 58; S_C = 62; S_TAB = 64; S_KX = 80; S_SPIN = 90; S_SP = 91; S_HS = 60; S_JO = 4
T_CLS, T_XO, T_ST, T_K0, T_HO, T_FL, T_DS, T_DR, T_U = [S_TAB+i for i in range(9)]
T_O0 = S_TAB+14; T_K1 = S_TAB+15
VGO, VZ = 8, 9
VXD = 10; VWD = 17; VDD = 19; XA = 23; WA = 29; DA = 32
VH, VHL, VHT, VPA, VPT, VPR, VRD, VO = 44, 45, 46, 47, 48, 49, 50, 51
XR = 52; RING = 6; ET = 100
def acc1(b): return 204 - 16*b
HB3 = [('a', 0), ('a', 56), ('v', 52)]; ACC2 = 112; OWN = 108; OQ = 132; RT = 8

class Lds:
    def __init__(s):
        s.free = list(range(10)); s.cur = None; s.fill = 4; s.live = {}; s.addr = {}
    def can(s, quad): return bool(s.free) if (quad or s.fill == 4) else True
    def alloc(s, key, quad):
        if quad:
            q = s.free.pop(0); s.live[q] = {key}; s.addr[key] = q*16384; return
        if s.fill == 4:
            s.cur = s.free.pop(0); s.fill = 0; s.live[s.cur] = {'open'}
        s.live[s.cur].add(key); s.addr[key] = s.cur*16384 + s.fill*4096; s.fill += 1
        if s.fill == 4: s.live[s.cur].discard('open')
    def close(s):
        if s.fill < 4:
            s.fill = 4; s.live[s.cur].discard('open'); s._chk(s.cur)
    def _chk(s, q):
        if not s.live[q]: del s.live[q]; s.free.append(q)
    def release(s, key):
        q = s.addr[key]//16384; s.live[q].discard(key); s._chk(q)

def setup_common(a):
    a.stamp('entry_rt', True, 0); a.stamp('entry', False, 0)
    a('s_cmp_ge_u32 s2, 256'); a('s_cbranch_scc1 L_end')
    a('s_load_dwordx8 s[4:11], s[0:1], 0')
    a('s_load_dwordx4 s[12:15], s[0:1], 32')
    a('s_load_dwordx2 s[16:17], s[0:1], 48')
    a('s_getpc_b64 s[18:19]'); a.label('L_pc')
    a('s_add_u32 s92, s18, jobtab-L_pc'); a('s_addc_u32 s93, s19, 0')
    a('s_lshl_b32 s3, s2, 6')
    a('s_load_dwordx16 %s, s[92:93], s3' % sr(S_TAB, 16))
    a('v_lshrrev_b32 v1, 6, v0'); a('v_lshlrev_b32 v%d, 7, v0' % VPR)
    a('v_and_b32 v0, 63, v0')
    a('v_readfirstlane_b32 s%d, v1' % S_WAVE)
    for b, sz in ((S_X, XB), (S_WG, WB), (S_WU, WB), (S_WD, WB), (S_OUT, OB), (S_H, WSB), (S_DBG, 256)):
        a('s_mov_b32 s%d, %d' % (b+2, sz)); a('s_mov_b32 s%d, 0x20000' % (b+3))
    a('s_lshl_b32 s%d, s%d, 10' % (S_M0X, S_WAVE))
    a('s_lshl_b32 s%d, s%d, 12' % (S_M0W, S_WAVE))
    a('s_mov_b32 s%d, 0x%08x' % (S_C, f2u(C2))); a('s_mov_b32 s%d, 0x%08x' % (S_C+1, f2u(C1)))
    l8, p8, m, g, r, c = 2, 3, 4, 5, 6, 7
    t0, t1 = ET, ET+1
    a('v_lshrrev_b32 v%d, 3, v0' % l8); a('v_and_b32 v%d, 7, v0' % p8)
    a('v_and_b32 v%d, 15, v0' % m); a('v_lshrrev_b32 v%d, 4, v0' % g)
    a('v_bfe_u32 v%d, v0, 2, 2' % r); a('v_and_b32 v%d, 3, v0' % c)
    a('v_mov_b32 v%d, 0' % VZ)
    a('s_lshl_b32 s%d, s%d, 3' % (S_T0, S_WAVE))
    a('v_add_u32 v%d, s%d, v%d' % (t0, S_T0, l8))
    a('v_bfe_u32 v%d, v%d, 1, 3' % (t1, t0))
    a('v_xor_b32 v%d, v%d, v%d' % (t1, t1, p8))
    a('v_mul_u32_u24 v%d, 1280, v%d' % (VXD, t0))
    a('v_lshl_add_u32 v%d, v%d, 4, v%d' % (VXD, t1, VXD))
    a('v_mul_u32_u24 v%d, 3456, v%d' % (t0, t0))
    a('s_and_b32 s%d, s%d, 1' % (S_T0, S_WAVE)); a('s_lshl_b32 s%d, s%d, 2' % (S_T0, S_T0))
    a('v_and_b32 v%d, 2, v%d' % (t1, l8))
    a('v_xor_b32 v%d, v%d, v%d' % (t1, t1, p8))
    a('v_xor_b32 v%d, s%d, v%d' % (VWD, S_T0, t1))
    a('v_lshl_add_u32 v%d, v%d, 4, v%d' % (VWD, VWD, t0))
    a('v_add_u32 v%d, %d, v%d' % (VWD+1, 32*3456, VWD))
    a('s_mul_i32 s%d, s%d, 448' % (S_T0, S_WAVE))
    a('v_add_u32 v%d, s%d, v%d' % (t0, S_T0, l8))
    a('v_mul_u32_u24 v%d, 1280, v%d' % (t0, t0))
    a('v_lshl_add_u32 v%d, v%d, 4, v%d' % (VDD, t1, t0))
    a('v_xor_b32 v%d, 64, v%d' % (VDD+1, VDD))
    a('v_add_u32 v%d, %d, v%d' % (VDD+1, 8*1280, VDD+1))
    a('v_lshrrev_b32 v%d, 1, v%d' % (t0, m))
    a('v_xor_b32 v%d, v%d, v%d' % (t0, t0, g))
    a('v_lshlrev_b32 v%d, 4, v%d' % (t0, t0))
    a('v_lshl_add_u32 v%d, v%d, 7, v%d' % (XA, m, t0))
    a('v_xor_b32 v%d, 64, v%d' % (XA+1, XA))
    a('v_lshrrev_b32 v%d, 1, v%d' % (t0, r))
    a('v_and_b32 v%d, 1, v%d' % (t1, g))
    a('v_lshl_or_b32 v%d, v%d, 1, v%d' % (t0, t1, t0))
    a('v_xor_b32 v%d, s%d, v%d' % (t0, S_WAVE, t0))
    a('v_lshlrev_b32 v%d, 5, v%d' % (t0, t0))
    a('v_lshl_add_u32 v%d, v%d, 3, v%d' % (t0, c, t0))
    a('v_lshl_add_u32 v%d, v%d, 3, v%d' % (t1, g, r))
    a('v_lshl_add_u32 v%d, v%d, 7, v%d' % (WA, t1, t0))
    for w in (1, 2):
        a('v_add_u32 v%d, %d, v%d' % (XA+2*w, w*65536, XA)); a('v_add_u32 v%d, %d, v%d' % (XA+2*w+1, w*65536, XA+1))
        a('v_add_u32 v%d, %d, v%d' % (WA+w, w*65536, WA))
    a('v_add_u32 v%d, s%d, v%d' % (DA, S_M0W, WA))
    for d in range(1, 4): a('v_xor_b32 v%d, %d, v%d' % (DA+d, d*32, DA))
    for w in (1, 2):
        for d in range(4): a('v_add_u32 v%d, %d, v%d' % (DA+4*w+d, w*65536, DA+d))
    a('s_waitcnt lgkmcnt(0)')
    for b, src, off, sz in ((S_X, 4, T_XO, XB), (S_WG, 6, T_ST, WB), (S_WU, 8, T_ST, WB)):
        a('s_add_u32 s%d, s%d, s%d' % (b, src, off)); a('s_addc_u32 s%d, s%d, 0' % (b+1, src+1))
        a('s_sub_u32 s%d, %d, s%d' % (b+2, sz, off))
    a('s_bitcmp1_b32 s%d, 8' % T_K1)
    a('s_cselect_b32 s%d, %d, 0' % (S_T0, 6*40960)); a('s_mov_b32 s%d, 40960' % S_T1); a('s_cselect_b32 s%d, %d, s%d' % (S_T1, -40960, S_T1))
    a('s_cselect_b32 s%d, %d, 0' % (S_HO, 6*110592)); a('s_mov_b32 s%d, 110592' % S_HS); a('s_cselect_b32 s%d, %d, s%d' % (S_HS, -110592, S_HS))
    a('v_add_u32 v%d, s%d, v%d' % (VXD, S_T0, VXD))
    for b in range(1, 7): a('v_add_u32 v%d, s%d, v%d' % (VXD+b, S_T1, VXD+b-1))
    a.stamp('ptrs')
    a('s_cmp_eq_u32 s%d, 1' % T_CLS); a('s_cbranch_scc1 L_cls1')
    for c in range(2, 2 + len(VARS[P.SCHED])): a('s_cmp_eq_u32 s%d, %d' % (T_CLS, c)); a('s_cbranch_scc1 L_cls%d' % c)

def setup_ptrs(a):
    for b, src in ((S_WD, 10), (S_OUT, 12), (S_DBG, 14), (S_H, 16)):
        a('s_mov_b64 s[%d:%d], s[%d:%d]' % (b, b+1, src, src+1))

def setup_late(a, cls):
    l8, p8, m, g, r, c = 2, 3, 4, 5, 6, 7
    t0, t1, t2 = ET, ET+1, ET+2
    for q in range(2): a('v_add_u32 v%d, s%d, v%d' % (VDD+q, T_DS, VDD+q))
    for q in range(2): a('v_add_u32 v%d, %d, v%d' % (VDD+2+q, 16*1280, VDD+q))
    a('v_and_b32 v%d, 1, v%d' % (t0, g))
    a('v_mul_u32_u24 v%d, 55296, v%d' % (t0, t0))
    a('v_lshrrev_b32 v%d, 1, v%d' % (t1, g))
    a('v_lshl_add_u32 v%d, v%d, 8, v%d' % (t0, t1, t0))
    a('v_lshl_add_u32 v%d, v%d, 4, v%d' % (t0, m, t0))
    a('s_lshl_b32 s%d, s%d, 9' % (S_T0, S_WAVE)); a('s_add_u32 s%d, s%d, s%d' % (S_T0, S_T0, T_HO))
    a('v_add_u32 v%d, s%d, v%d' % (VH, S_T0, t0))
    a('s_mul_i32 s%d, s%d, 14336' % (S_T0, S_WAVE))
    a('v_lshlrev_b32 v%d, 4, v0' % t0)
    a('v_add_u32 v%d, s%d, v%d' % (VHL, S_T0, t0))
    a('v_add_u32 v%d, s%d, v%d' % (VRD, S_M0X, t0))
    a('s_cmp_eq_u32 s%d, 3' % S_WAVE)
    a('s_cselect_b32 s%d, 5, 6' % S_T1)
    a('s_movk_i32 s%d, 14336' % S_HL); a('s_cselect_b32 s%d, 12288, s%d' % (S_HL, S_HL))
    a('s_lshl_b32 s%d, s%d, 10' % (S_T0, T_DR))
    for j in range(14):
        a('s_cmp_ge_u32 s%d, s%d' % (S_T0, S_HL)); a('s_cselect_b32 s%d, 0x2000000, s%d' % (S_JO+j, S_T0))
        if j < 13:
            a('s_add_u32 s%d, s%d, 1024' % (S_T0, S_T0)); a('s_cmp_eq_u32 s%d, 14336' % S_T0); a('s_cselect_b32 s%d, 0, s%d' % (S_T0, S_T0))
    a('v_mul_u32_u24 v%d, 1280, v%d' % (t0, m))
    a('v_lshl_add_u32 v%d, v%d, 4, v%d' % (t0, t1, t0))
    a('s_lshl_b32 s%d, s%d, 5' % (S_T0, S_WAVE)); a('s_add_u32 s%d, s%d, s%d' % (S_T0, S_T0, T_DS))
    a('v_add_u32 v%d, s%d, v%d' % (VO, S_T0, t0))
    a('v_mov_b32 v%d, s%d' % (t0, T_U))
    for i in range(1, 6):
        a('v_cmp_eq_u32 vcc, %d, v%d' % (i, l8))
        a('v_mov_b32 v%d, s%d' % (t2, T_U+i)); a('s_nop 0')
        a('v_cndmask_b32 v%d, v%d, v%d, vcc' % (t0, t0, t2))
    a('v_lshrrev_b32 v%d, 1, v%d' % (t0, t0))
    a('v_mul_u32_u24 v%d, 37, v%d' % (t2, t0))
    a('v_lshrrev_b32 v%d, 8, v%d' % (t2, t2))
    a('v_mul_u32_u24 v%d, 7, v%d' % (VPT, t2))
    a('v_sub_u32 v%d, v%d, v%d' % (VPT, t0, VPT))
    if P.MID:
        a('v_sad_u32 v%d, v%d, 3, 0' % (VPT, VPT)); a('v_lshlrev_b32 v%d, 1, v%d' % (VPT, VPT))
        a('v_cmp_ne_u32 vcc, 9, v%d' % t2); a('s_nop 1'); a('v_cndmask_b32 v%d, 0, v%d, vcc' % (VPT, VPT))
    a('v_mul_u32_u24 v%d, 27, v%d' % (t2, t2))
    a('v_min_u32 v%d, s%d, v%d' % (t0, S_T1, p8))
    a('s_mul_i32 s%d, s%d, 7' % (S_T0, S_WAVE))
    a('v_add3_u32 v%d, v%d, v%d, s%d' % (t0, t0, t2, S_T0))
    a('v_lshlrev_b32 v%d, 7, v%d' % (t0, t0))
    a('v_add_u32 v%d, %d, v%d' % (VPA, FLAG0, t0))
    if P.DPF:
        a('s_lshr_b32 s%d, s%d, 16' % (S_T0, T_K1)); a('s_mul_i32 s%d, s%d, %d' % (S_T1, S_WAVE, 1 if cls == 0 else 4)); a('s_add_u32 s%d, s%d, s%d' % (S_T0, S_T0, S_T1))
        a('s_lshl_b32 s%d, s%d, 6' % (S_T0, S_T0))
        a('s_bfe_u32 s%d, s%d, 0x1000a' % (S_T1, T_K1)); a('s_mul_i32 s%d, s%d, 640' % (S_SP, S_T1))
        for n in range(1 if cls == 0 else 4):
            a('v_add_u32 v%d, s%d, v0' % (t0, S_T0))
            if n: a('v_add_u32 v%d, %d, v%d' % (t0, 64*n, t0))
            a('v_mul_u32_u24 v%d, 13108, v%d' % (t2, t0)); a('v_lshrrev_b32 v%d, 16, v%d' % (t2, t2))
            a('v_mul_u32_u24 v%d, 640, v%d' % (t2, t2))
            a('v_lshl_add_u32 v%d, v%d, 7, v%d' % (248+n if cls else 252, t0, t2))
    a('s_add_u32 s%d, s%d, %d' % (T_FL, T_FL, FLAG0))
    a('s_lshl_b32 s%d, s%d, 2' % (S_T0, S_WAVE)); a('s_add_u32 s%d, s%d, s%d' % (T_FL, T_FL, S_T0))

TAIL = {}
def gen_class(a, code):
    cls = code if code < 3 else 0
    var = code - 2 if code >= 3 else 0
    coldpos = VARS[P.SCHED][var] if cls == 0 else [0]
    name = 'c%d' % code
    nblk, nstrip, nun = ((7, 1, 5), (1, 2, 6), (1, 3, 5))[cls]
    R = P.R if cls == 0 else 0
    NPUB = nblk*nstrip
    lds = Lds()
    nst = [0]
    eord = [3, 2, 4, 1, 5, 0, 6] if (cls == 0 and P.MID) else list(range(NPUB))
    dd = [('a', 160+16*i, 0) for i in range(6)] + [('v', 220, 0), ('v', 236, 0), ('a', 144, 0)]
    dd += [('v', acc1(b), 0) for b in range(NPUB, 5)] + [('v', acc1(b), n+1) for n, b in enumerate(eord) if b < 5]
    assert len(dd) == 14
    def dreg(j, o, n): return vr(dd[j][1] + o, n, dd[j][0])
    def wset(st, s): return 16*((s*nstrip + st) % (max(R+1, 2) if cls == 0 else 6))
    def Wt(st, s): return [('W', st, s, ks, mat) for ks in range(2) for mat in range(2)]
    phases = []
    for s in range(10 - R):
        it = []; tl = []
        for st in range(nstrip):
            tl += Wt(st, s)
            if st == 0: tl += [('X', b, s) for b in range(nblk)]
            for b in range(nblk):
                for h in range(2):
                    it.append(dict(acc=acc1(st*nblk + b) + h*8, w=(st, s), x=('X', b, s), h=h, first=(s == 0), rev=False))
        phases.append(dict(it=it, tiles=tl))
    if R:
        ss = list(range(10 - R, 10))
        b = 0
        while b < nblk:
            bl = [0] if b == 0 else list(range(b, min(nblk, b + P.BPAIR)))
            it = []; tl = []
            for bb in bl:
                for s in ss: tl += (Wt(0, s) if bb == 0 else []) + [('X', bb, s)]
                for h in range(2):
                    for i, s in enumerate(ss):
                        it.append(dict(acc=acc1(bb) + h*8, w=(0, s), x=('X', bb, s), h=h, first=False, rev=(i % 2 == 1)))
                    if h == 0 and P.ELAG and bb > 0: it.append(dict(epi=bb-1))
                if not P.ELAG or bb == nblk-1: it.append(dict(epi=bb, nop=True))
            phases.append(dict(it=it, tiles=tl)); b = bl[-1] + 1
    else:
        phases[-1]['it'] += [dict(epi=i, nop=(n == 0)) for n, i in enumerate(eord)]
    crit = [t for ph in phases for t in ph['tiles']]
    n = 0; items = []; groups = []; seenw = set()
    for pi, ph in enumerate(phases):
        n += len(ph['tiles']); ph['end'] = n
        for x in ph['it']:
            x['ph'] = pi; items.append(x)
            if 'epi' not in x:
                x['id'] = len(groups); groups.append(x); x['newW'] = x['w'] not in seenw; seenw.add(x['w'])
    bg = [('D', j, q) for j in range(14) for q in range(4)]
    dst = dict(next=0, avail=0, rel=[], relb=[])
    st8 = dict(pos=0, bpos=0, last=-10000, kw=None, armed=None, limit=0, kxn=0, epi=False, ph=0)
    def need_kx(s):
        while st8['kxn'] <= s:
            i = st8['kxn']
            a('s_bfe_u32 s%d, s%d, 0x%x' % (S_KX+i, T_K0 if i < 8 else T_K1, (4 << 16) | (4*(i % 8))))
            a('s_lshl_b32 s%d, s%d, 7' % (S_KX+i, S_KX+i))
            st8['kxn'] += 1
    dat = str(P.DAT); dcpos = phases[int(dat[var % len(dat)])]['end'] if cls == 0 else len(crit)
    def dc_due(): return not P.DPF and st8['pos'] >= dcpos and st8['bpos'] < P.DC
    pfd = [False]
    def dpf_try():
        if not P.DPF or pfd[0] or st8['armed'] or st8['pos'] < (dcpos if cls == 0 else phases[5]['end']): return False
        if cls == 0 and outstanding() > 3: return True
        pfd[0] = True
        for n in range(1 if cls == 0 else 4):
            for i in range(8):
                comp.append(max([a.t + P.LPF, comp[-1] + 30, comp[-8] + P.LPF]))
            a.vmem('buffer_load_dword v254, v%d, %s, s%d offen' % (248+n if cls else 252, sr(S_WD), S_SP), 'pf', comp[-1] - a.t)
        st8['last'] = a.t
        return True
    def crit_ok(force=False): return st8['pos'] < min(len(crit), st8['limit']) and lds.can(False) and (force or not dc_due())
    def bg_ok():
        if st8['bpos'] >= len(bg): return False
        done = st8['pos'] >= len(crit)
        if not done and not dc_due(): return False
        if done: lds.close()
        if bg[st8['bpos']][2] != 0: return True
        return bool(dst['relb']) or len(lds.free) > 0
    def can_arm(force=False): return not st8['armed'] and (crit_ok(force) or bg_ok())
    def arm(force=False):
        if crit_ok(force): t = crit[st8['pos']]; st8['pos'] += 1
        else: t = bg[st8['bpos']]; st8['bpos'] += 1
        if t[0] == 'W':
            _, st, s, ks, mat = t
            if st8['kw'] != (st, s):
                need_kx(s)
                a('s_mul_i32 s%d, s%d, 1728' % (S_KW, S_KX+s))
                if st: a('s_add_u32 s%d, s%d, %d' % (S_KW, S_KW, st*128))
                st8['kw'] = (st, s)
            lds.alloc(t, False)
            a('s_add_u32 m0, s%d, %d' % (S_M0X, lds.addr[t]))
            ins = 'buffer_load_dwordx4 v%d, %s, s%d offen lds' % (VWD+ks, sr(S_WU if mat else S_WG), S_KW)
        elif t[0] == 'X':
            _, b, s = t
            need_kx(s); lds.alloc(t, False)
            a('s_add_u32 m0, s%d, %d' % (S_M0X, lds.addr[t]))
            ins = 'buffer_load_dwordx4 v%d, %s, s%d offen lds' % (VXD+b, sr(S_X), S_KX+s)
        else:
            _, j, q = t
            if q == 0:
                if dst['relb']:
                    lds.release(('D', dst['relb'].pop(0))); lds.free.insert(0, lds.free.pop())
                lds.alloc(('D', j), True); a('s_mul_i32 s%d, s%d, 40' % (S_DO, S_JO+j))
            a('s_add_u32 m0, s%d, %d' % (S_M0W, lds.addr[('D', j)] + q*1024))
            ins = 'buffer_load_dwordx4 v%d, %s, s%d offen lds' % (VDD+q, sr(S_WD), S_DO)
        st8['armed'] = (ins, t, P.DLAT if t[0] == 'D' else P.LLAT)
    fired = set(); comp = []
    def lat_of(t):
        if t[0] == 'D': return P.LDC if (4*t[1] + t[2] < P.DC and not P.DPF) else P.LH
        if P.REV and t[0] == 'X' and t[1] >= 4: return P.LH
        return (P.LC0 if t[2] == 0 else P.LC) if t[2] in coldpos else P.LH
    def outstanding(): return sum(1 for c in comp[-24:] if c > a.t)
    def fire():
        ins, t, lat = st8['armed']; st8['armed'] = None
        if len(comp) >= 12: a.t = max(a.t, comp[-12])
        L = lat_of(t)
        if cls == 0 and L > P.LH and (P.NTC >> 'WXD'.index(t[0])) & 1: ins = ins.replace(' lds', ' nt lds')
        c = max([a.t + L] + ([comp[-1] + P.SVC] if comp else []) + ([comp[-8] + L] if len(comp) >= 8 else []))
        comp.append(c)
        a.vmem(ins, t, c - a.t, P.ECOST if st8['epi'] else 4); st8['last'] = a.t; fired.add(t)
    def flush_armed():
        if st8['armed']: a('s_nop 0'); fire()
    def dma_now(n=1, force=False):
        flush_armed()
        for _ in range(n):
            assert can_arm(force), (st8, lds.free, lds.live)
            arm(force); a('s_nop 0'); fire()
    def may_issue():
        if a.t - st8['last'] < P.MINP - 20: return False
        if cls == 0 and st8['pos'] >= len(crit) and st8['bpos'] < P.DC + 4 and a.t - st8['last'] < P.PDC: return False
        if cls: return True
        if P.ELOAD and (st8['epi'] or st8.get('stop')): return st8['bpos'] < P.DMAX and outstanding() < P.EOUT and a.t - st8['last'] >= P.ELOAD
        if st8['epi'] or st8.get('stop') or st8['bpos'] >= P.DMAX: return False
        return outstanding() < P.OUT
    rq = []; dq = []
    def d_release():
        for j in list(dst['rel']):
            if ('dr', j) not in a.lg:
                dst['rel'].remove(j)
                if st8['pos'] >= len(crit): lds.release(('D', j))
                else: dst['relb'].append(j)
    def d_try(force=False):
        d_release()
        j = dst['next']
        if dq or j >= 14 or dd[j][2] > nst[0] or ('D', j, 3) not in fired: return
        if not force and a.vm_ready(('D', j, 3)) > a.t: return
        ad = lds.addr[('D', j)]; w = ad//65536
        dq.append(lambda: a.wait(vm=('D', j, 3)))
        for d in range(4):
            for t in range(2):
                def f(d=d, t=t):
                    a.lds('ds_read_b64_tr_b16 %s, v%d offset:%d' % (dreg(j, d*4 + t*2, 2), DA+4*w+d, ad - w*65536 + t*512), ('dr', j))
                    if d == 3 and t == 1: dst['rel'].append(j)
                dq.append(f)
        dst['next'] += 1
    pub = dict(done=0, stores=[], tg=([int(c) for c in str(P.PUBS)] if cls == 0 else [nstrip]), n=0)
    def flag_atomic(val, reg):
        a('s_mov_b32 s%d, %d' % (reg, val))
        for st in range(nstrip):
            a('s_atomic_umax s%d, s[%d:%d], s%d%s' % (reg, S_H, S_H+1, T_FL, ' offset:%d' % (128*st) if st else ''))
    def pub_try(force=False):
        if not pub['tg']: return False
        ok = [cnt for cnt in pub['stores'] if a.vm_ready(('hs', cnt)) <= a.t or force]
        if not ok or max(ok) < pub['tg'][0]: return False
        c = max(ok)
        a.wait(vm=('hs', c))
        flag_atomic(c if cls == 0 else 1, [0, 1, 3, 96, 97][pub['n']] if c < NPUB else S_FV); pub['n'] += 1
        pub['done'] = c; pub['stores'] = [x for x in pub['stores'] if x > c]
        pub['tg'] = [x for x in pub['tg'] if x > c]
        a.raw('; publish %d est %d' % (c, a.t))
        return True
    def xread(g, ks):
        ad = lds.addr[g['x']] + g['h']*2048; w = ad//65536
        a.lds('ds_read_b128 %s, v%d offset:%d' % (vr(XR + (g['id'] % RING)*8 + ks*4), XA+2*w+ks, ad - w*65536), ('x', g['id'], ks))
    def wreg(g, mat, ks): return wset(*g['w']) + ks*8 + mat*4
    def wread(g, mat, ks, tt):
        t = ('W',) + g['w'] + (ks, mat); ad = lds.addr[t]; w = ad//65536
        a.lds('ds_read_b64_tr_b16 %s, v%d offset:%d' % (vr(wreg(g, mat, ks) + tt*2, 2, 'a'), WA+w, ad - w*65536 + tt*512), t + (tt,))
    def order(g): return ((1,0),(1,1),(0,0),(0,1)) if g['rev'] else ((0,0),(0,1),(1,0),(1,1))
    qph = [0]; lastrd = [-1000]; spf = [0]
    def queue_reads(g):
        if g['ph'] > qph[0]:
            qph[0] = g['ph']
            for i in range(P.KD): rq.append(('f', lambda: a.lds('ds_read_b32 v253, v%d' % XA, 'dummy')))
            rq.append(('bar', g['ph']))
        W = lambda mk: [('f', lambda tt=tt: wread(g, mk[0], mk[1], tt)) for tt in range(2)]
        X = lambda ks: [('f', lambda: xread(g, ks))]
        o = order(g)
        if g['newW']: rq.extend(W(o[0]) + X(0) + W(o[1]) + X(1) + W(o[2]) + W(o[3]))
        else: rq.extend(X(0) + X(1))
    def set_limit(i):
        st8['ph'] = i
        st8['limit'] = phases[i+1]['end'] + (P.LOOKMAX if cls == 0 else P.LOOK) if i+1 < len(phases) else len(crit)
    def touch():
        a('v_lshlrev_b32 v252, %d, v%d' % (P.TS - 7, VPR))
        for i, srd in enumerate((S_WD, S_OUT, S_H)):
            if (P.TM >> i) & 1: a.vmem('buffer_load_dword v254, v252, %s, 0 offen' % sr(srd), 'pf', P.LLAT)
    def barrier(pi, extra=[]):
        flush_armed()
        if pi < len(phases):
            while st8['pos'] < phases[pi]['end']: dma_now(1, True)
            need = max(a.vm_ready(t) for t in phases[pi]['tiles'])
            if cls:
                while st8['pos'] < phases[pi]['end'] + P.TOP and crit_ok(): dma_now()
            else:
                o = P.OUT if pi else P.OUT0
                while can_arm() and need > a.t and comp[-o] <= need + 1: a.t = max(a.t, comp[-o]); dma_now()
        if pi == 9 - R: check_go()
        real = [x for x in a.lg if x != 'dummy']
        a.wait(vm=(phases[pi]['tiles'] if pi < len(phases) else []) + extra, lg=real)
        d_release()
        a('s_barrier')
        for j in dst['relb']: lds.release(('D', j))
        dst['relb'] = []
        if pi > 0:
            for t in phases[pi-1]['tiles']: lds.release(t)
        if pi < len(phases): set_limit(pi)
        a.stamp('b%d' % pi, lvl=(2 if pi not in (0, 7, 8, 9) else 1))
        if P.SPF and pi >= P.SPF0:
            if spf[0] == 0:
                a('s_mul_i32 s%d, s2, 8704' % S_SP); a('s_lshl_b32 s%d, s%d, 7' % (S_T0, S_WAVE)); a('s_add_u32 s%d, s%d, s%d' % (S_SP, S_SP, S_T0))
            for _ in range(P.SPFN):
                if spf[0] < 17: a('s_buffer_load_dword s%d, %s, s%d offset:%d' % (S_SPIN, sr(S_WD), S_SP, spf[0]*512)); spf[0] += 1
        if P.TOUCH in (6, 7) and pi == (max(0, coldpos[-1] - 2) if P.TAT < 0 else P.TAT): touch()
        if P.DLY and cls == 0 and pi == P.DLYAT: a('s_sleep %d' % P.DLY)
        if P.TOUCH == 4 and pi == coldpos[-1] - 2:
            a('v_lshlrev_b32 v252, 20, v0')
            for srd in (S_WD, S_OUT, S_H): a.vmem('buffer_load_dword v254, v252, %s, 0 offen' % sr(srd), 'pf', P.LLAT)
        if P.PF2 and pi == P.PF2 and cls == 0:
            a('s_add_u32 s92, s18, L_tail-L_pc'); a('s_addc_u32 s93, s19, 0')
            a('s_mov_b32 s94, L_codeend_c0-L_tail'); a('s_mov_b32 s95, 0x20000')
            a.vmem('buffer_load_dword v254, v%d, s[92:95], 0 offen' % VPR, 'pf', P.LH)
        if pi == 7 - R: a.vmem('buffer_load_dword v%d, v%d, %s, 0 offen sc1' % (VGO, VZ, sr(S_DBG)), 'go', P.LLAT)
    def rq_pop(force=True):
        it = rq[0]
        if it[0] == 'bar':
            if not force and a.t - lastrd[0] < 70: return False
            rq.pop(0); barrier(it[1]); return True
        rq.pop(0); it[1](); lastrd[0] = a.t; return True
    def gap(budget=2):
        n = 0
        if st8['armed']: fire(); n += 1
        while rq and n < budget and (n == 0 or len(rq) > 3):
            if not rq_pop(False): break
            n += 1
        if n < budget and not dpf_try() and can_arm() and may_issue(): arm(); n += 1
        if n == 0 and pub_try(): return
        if n < budget and not (rq and rq[0][0] == 'bar') and not (st8['epi'] and R):
            d_try()
            if dq: dq.pop(0)(); n += 1
    slow = []
    def check_go():
        a.wait(vm='go')
        lab = 'L_go_%s' % name
        a('v_readfirstlane_b32 s%d, v%d' % (S_T0, VGO)); a('s_nop 0')
        a('s_cmp_eq_u32 s%d, 0' % S_T0); a('s_cbranch_scc1 %ss' % lab)
        a.label(lab)
        def emit():
            a.label(lab + 's')
            a('s_waitcnt lgkmcnt(0)')
            a('s_mov_b32 s%d, 0' % S_SPIN)
            a.label(lab + 'w')
            a('s_sleep 2')
            a('buffer_load_dword v1, v%d, %s, 0 offen sc1' % (VZ, sr(S_DBG)))
            a('s_waitcnt vmcnt(0)')
            a('v_readfirstlane_b32 s%d, v1' % S_T0)
            a('s_add_u32 s%d, s%d, 1' % (S_SPIN, S_SPIN)); a('s_cmp_gt_u32 s%d, 0x80000' % S_SPIN); a('s_cbranch_scc1 %s' % lab)
            a('s_cmp_eq_u32 s%d, 0' % S_T0); a('s_cbranch_scc1 %sw' % lab)
            a('s_branch %s' % lab)
        slow.append(emit)
    lastn = [0]; pend = []
    def epilogue(n, nop):
        st8['epi'] = True
        ab = acc1(n); hoff = n*110592 if cls == 0 else n*2048
        if nop:
            a('s_nop 7')
            if P.STAG and cls == 0:
                for w in (1, 2, 3):
                    a('s_cmp_lt_u32 s%d, %d' % (S_WAVE, w)); a('s_cbranch_scc1 L_stag_%s' % name); a('s_nop %d' % (P.STAG-1))
                a.label('L_stag_%s' % name)
        T = ET
        G = [ab + h*8 + 2*p for h in range(2) for p in range(2)]
        def em(t, c=4): a(t, c); gap(1)
        for i in range(4): em('v_pk_mul_f32 %s, %s, %s' % (vr(T+2*i, 2), vr(G[i], 2), vr(G[i], 2)))
        for i in range(4): em('v_pk_fma_f32 %s, %s, s[%d:%d], s[%d:%d] op_sel:[0,0,1] op_sel_hi:[1,0,1]' % (vr(T+2*i, 2), vr(T+2*i, 2), S_C, S_C+1, S_C, S_C+1))
        for i in range(4): em('v_pk_mul_f32 %s, %s, %s' % (vr(T+2*i, 2), vr(T+2*i, 2), vr(G[i], 2)))
        for i in range(8): em('v_exp_f32 v%d, v%d' % (T+i, T+i), 8)
        for i in range(4): em('v_pk_add_f32 %s, %s, 1.0 op_sel_hi:[1,0]' % (vr(T+2*i, 2), vr(T+2*i, 2)))
        for i in range(8): em('v_rcp_f32 v%d, v%d' % (T+i, T+i), 8)
        for i in range(4): em('v_pk_mul_f32 %s, %s, %s' % (vr(T+2*i, 2), vr(T+2*i, 2), vr(G[i], 2)))
        for i in range(4): em('v_pk_mul_f32 %s, %s, %s' % (vr(T+2*i, 2), vr(T+2*i, 2), vr(G[i]+4, 2)))
        for i in range(4): em('v_cvt_pk_bf16_f32 v%d, v%d, v%d' % (ab+i, T+2*i, T+2*i+1))
        flush_armed()
        a('s_nop 1')
        a('v_permlane16_swap_b32 v%d, v%d' % (ab, ab+2))
        a('v_permlane16_swap_b32 v%d, v%d' % (ab+1, ab+3))
        pend.append(n)
        if cls or str(nst[0] + len(pend)) in str(P.SB):
            for m in pend:
                if cls: a('s_mov_b32 s%d, %d' % (S_HO, m*2048))
                else:
                    a('s_mul_i32 s%d, s%d, %d' % (S_T0, S_HS, m - lastn[0])); a('s_add_u32 s%d, s%d, s%d' % (S_HO, S_HO, S_T0)); lastn[0] = m
                nst[0] += 1
                comp.append(max(a.t + P.LS, comp[-1] + P.SVC))
                a.vmem('buffer_store_dwordx4 %s, v%d, %s, s%d offen sc1' % (vr(acc1(m)), VH, sr(S_H), S_HO), ('hs', nst[0]), max(P.SLAT, comp[-1] - a.t), 20)
                pub['stores'].append(nst[0])
            del pend[:]
        st8['epi'] = False
        a.stamp('e%d' % nst[0], lvl=(1 if nst[0] == NPUB else 3))
    PL = 'buffer_load_dwordx4 v[4:7], v%d, %s, 0 offen sc1' % (VPA, sr(S_H))
    def rdy_test(u): return ['s_bfe_u32 s%d, s%d, 0x%x' % (S_T0, S_RDY + u//4, (8 << 16) | ((u % 4)*8)), 's_cmp_eq_u32 s%d, 0xff' % S_T0]
    def poll_issue(u=None):
        if u is None:
            a('s_mov_b64 %s, 0' % sr(S_RDY, 2)); a.vmem(PL, 'poll', P.LLAT); return
        for t in rdy_test(u): a(t)
        a('s_cselect_b32 s%d, 0x40000000, 0' % S_T1)
        a.vmem('buffer_load_dwordx4 v[4:7], v%d, %s, s%d offen sc1' % (VPA, sr(S_H), S_T1), 'poll', P.LLAT)
    def poll_eval():
        a('v_min_u32 v4, v4, v5'); a('v_min3_u32 v4, v4, v6, v7')
        a('v_cmp_gt_u32 vcc, v4, v%d' % VPT); a('s_nop 0'); a('s_or_b64 %s, %s, vcc' % (sr(S_RDY, 2), sr(S_RDY, 2)))
    def need_unit(u):
        lab = 'L_nu_%s_%d' % (name, u)
        tst = rdy_test(u)
        for t in tst: a(t)
        a('s_cbranch_scc0 %ss' % lab)
        a.label(lab)
        pend = pub['done'] < NPUB
        assert nst[0] == NPUB
        def emit():
            a.label(lab + 's')
            a('s_waitcnt lgkmcnt(0)')
            a('s_mov_b32 s%d, 0' % S_SPIN)
            if pend:
                a('s_waitcnt vmcnt(0) lgkmcnt(0)'); flag_atomic(NPUB if cls == 0 else 1, S_FV)
            a.label(lab + 'w')
            a('s_lshl_b64 exec, 0xff, %d' % (8*u)); a(PL); a('s_mov_b64 exec, -1'); a('s_waitcnt vmcnt(0) lgkmcnt(0)'); poll_eval()
            for t in tst: a(t)
            a('s_cbranch_scc1 %s' % lab)
            if P.SLEEP: a('s_sleep %d' % P.SLEEP)
            a('s_add_u32 s%d, s%d, 1' % (S_SPIN, S_SPIN)); a('s_cmp_gt_u32 s%d, 0x80000' % S_SPIN); a('s_cbranch_scc0 %sw' % lab)
            a('s_branch %s' % lab)
        slow.append(emit)
    def pfcode(nm):
        a('s_add_u32 s92, s18, L_code_%s-L_pc' % nm); a('s_addc_u32 s93, s19, 0')
        a('s_mov_b32 s94, L_codeend_%s-L_code_%s' % (nm, nm)); a('s_mov_b32 s95, 0x20000')
        a.vmem('buffer_load_dword v254, v%d, s[92:95], 0 offen' % VPR, 'pf', P.LLAT)

    if code: a.label('L_cls%d' % code)
    if cls == 1:
        setup_ptrs(a)
        a('s_cmp_lg_u32 s%d, 0' % S_WAVE); a('s_cbranch_scc1 L_norst')
        a('s_bitcmp0_b32 s%d, 9' % T_K1); a('s_cbranch_scc1 L_norst')
        for i in range(4): a('v_mov_b32 v%d, 0' % (108+i))
        for i in range(5):
            a('s_mov_b32 s%d, %d' % (S_T0, FLAG0 + i*64*128))
            a('buffer_store_dwordx4 %s, v%d, %s, s%d offen sc1' % (vr(108), VPR, sr(S_H), S_T0))
        a.label('L_norst')
    if P.PFCODE == 2 and cls == 1:
        for c in [0] + list(range(3, 2 + len(VARS[P.SCHED]))): pfcode('c%d' % c)
    st8['limit'] = phases[0]['end']; dma_now(phases[0]['end'])
    if P.PFCODE == 1 or (P.PFCODE == 2 and cls == 1): pfcode(name)
    if P.PFCODE == 2 and cls == 1: pfcode('c2')
    a('s_barrier')
    st8['limit'] = phases[1]['end'] + 8
    dma_now(max(0, 12 - st8['pos']))
    if cls != 1: setup_ptrs(a)
    setup_late(a, cls)
    a.label('L_code_%s' % name)
    if P.TOUCH == 1:
        a('v_lshlrev_b32 v252, 20, v0')
        for srd in (S_WD, S_OUT, S_H): a.vmem('buffer_load_dword v254, v252, %s, 0 offen' % sr(srd), 'pf', P.LLAT)
    if P.TOUCH == 3:
        a('s_lshl_b32 s%d, s%d, 20' % (S_T0, S_WAVE)); a('s_lshl_b32 s%d, s%d, 21' % (S_T1, S_WAVE))
        a('s_buffer_load_dword s%d, %s, s%d' % (S_SPIN, sr(S_WD), S_T0))
        a('s_buffer_load_dword s%d, %s, s%d' % (S_SPIN, sr(S_OUT), S_T0))
        a('s_buffer_load_dword s%d, %s, s%d' % (S_SPIN, sr(S_H), S_T1))
        a('s_buffer_load_dword s%d, %s, s%d offset:0xffffc' % (S_SPIN, sr(S_H), S_T1))
        a('s_mov_b32 s%d, %d' % (S_T0, FLAG0 + 270*128 - 4))
        a('s_buffer_load_dword s%d, %s, s%d' % (S_SPIN, sr(S_H), S_T0))
        a('s_buffer_load_dword s%d, %s, 0xfc' % (S_SPIN, sr(S_DBG)))
    if P.TOUCH in (5, 7) and cls == 1: touch()
    if P.TOUCH == 2 and cls == 1:
        a('v_lshlrev_b32 v252, 20, v0')
        for srd in (S_WD, S_OUT, S_H): a.vmem('buffer_load_dword v254, v252, %s, 0 offen' % sr(srd), 'pf', P.LLAT)
    barrier(0)
    if cls == 1:
        a('s_cmp_lg_u32 s%d, 0' % S_WAVE); a('s_cbranch_scc1 L_nogo')
        a('s_bitcmp0_b32 s%d, 9' % T_K1); a('s_cbranch_scc1 L_nogo')
        a('s_mov_b32 s61, 1'); a('s_atomic_umax s61, s[%d:%d], 0' % (S_DBG, S_DBG+1))
        a.label('L_nogo')
    D = P.D
    nxt = 0; cur = 0
    polled = [False]
    for x in items:
        if 'epi' in x:
            while nxt < len(groups) and nxt < cur + D + 1: queue_reads(groups[nxt]); nxt += 1
            if cur == len(groups) and qph[0] < len(phases):
                qph[0] = len(phases); a.stamp('m'); barrier(len(phases))
                if cls == 0 and P.SHARE:
                    sig = repr(([x[0] for x in a.vm], a.lg, lds.free, sorted((k, v) for k, v in lds.addr.items() if k[0] == 'D'), dst, st8['bpos'], len(dq), a.nstamp))
                    if code == 0: TAIL['sig'] = sig; a.label('L_tail')
                    else:
                        assert sig == TAIL['sig'], (sig, TAIL['sig'])
                        a('s_branch L_tail')
                        for f in slow: f()
                        a.label('L_codeend_%s' % name)
                        if P.diag: a.raw(TAIL['names'].replace('cls 0', 'cls %d' % code))
                        return
            if x['epi'] == NPUB-1 and R: poll_issue(); polled[0] = True
            epilogue(x['epi'], x.get('nop')); continue
        g = x; cur = g['id'] + 1
        if cls == 0 and (len(groups) - g['id'])*64 < P.DSTOP: st8['stop'] = True
        while nxt < len(groups) and nxt <= g['id'] + D: queue_reads(groups[nxt]); nxt += 1
        if g['id'] == 0:
            while rq and rq[0][0] != 'bar' and len(a.lg) < 15: rq_pop()
        xb = XR + (g['id'] % RING)*8
        for i, (mat, ks) in enumerate(order(g)):
            need = [('x', g['id'], ks)]
            if g['newW']: need += [('W',) + g['w'] + (ks, mat, tt) for tt in range(2)]
            elif i == 0: need.append(('x', g['id'], 1))
            while any(n not in a.issued for n in need): rq_pop()
            a.wait(lg=need)
            c = '0' if (g['first'] and ks == 0) else vr(g['acc'] + mat*4)
            a.mfma(vr(g['acc'] + mat*4), vr(wreg(g, mat, ks), 4, 'a'), vr(xb + ks*4), c)
            gap()
    assert not rq
    flush_armed()
    a.raw('; D tiles left at P1 end: %d, next read group %d' % (len(bg) - st8['bpos'], dst['next']))
    st8['stop'] = False
    KS = P.KS if cls == 0 else 14
    parts = [(0, KS), (KS, 14)] if KS < 14 else [(0, 14)]
    ring = [('a', 72+4*i) for i in range(18)] + [('v', 52+4*i) for i in range(14)]
    seq = [(u, j) for j0, j1 in parts for u in range(nun) for j in range(j0, j1)]
    lidx = {x: n for n, x in enumerate(seq)}
    def hreg(u, j): p, b = ring[lidx[(u, j)] % len(ring)]; return vr(b, 4, p)
    chunks = []
    for pt, (j0, j1) in enumerate(parts):
        nc = -(-(j1-j0)//4)
        for u in range(nun):
            for c in range(nc): chunks.append((pt, u, j0 + (j1-j0)*c//nc, j0 + (j1-j0)*(c+1)//nc, c == nc-1))
    hq = []
    for n, (u, j) in enumerate(seq):
        if j in (0, KS):
            def ctl(u=u, j=j):
                if j == 0: a.wait(vm='poll'); poll_eval(); need_unit(u)
                a('s_mul_i32 s%d, s%d, %d' % (S_HL, T_U+u, 0 if P.FAKEH else 55296)); a('v_add_u32 v%d, s%d, v%d' % (VHT, S_HL, VHL))
                if j == 0: a.stamp('n%d' % u, lvl=(1 if u == 0 else 3))
                if j == 0 and u < nun-1 and KS < 14: poll_issue(u+1)
            hq.append((n, ctl))
        if KS == 14 and j == 14 - P.POLLB and u < nun-1: hq.append((n, lambda u=u: poll_issue(u+1)))
        hq.append((n, lambda u=u, j=j: a.vmem('buffer_load_dwordx4 %s, v%d, %s, s%d offen sc1' % (hreg(u, j), VHT, sr(S_H), S_JO+j), ('h', u, j), P.LLAT)))
        if n % P.DR == P.DR-1: hq.append((n, 'D'))
    def LA(): return P.LA0 if st8['bpos'] < len(bg) else P.LA
    lim = [4 + (P.LA0 if KS < 14 else P.LA)]
    def d_landed():
        j = dst['next']
        return j < 14 and ('D', j, 3) in fired and all(x[0] != ('D', j, 3) for x in a.vm)
    def h_pop():
        while hq and hq[0][0] < lim[0]:
            f = hq.pop(0)[1]
            if f == 'D':
                d_release()
                if can_arm(): dma_now(); return True
                continue
            f(); return True
        return False
    def d_step():
        while dq: dq.pop(0)()
        if st8['bpos'] >= len(bg): return False
        if can_arm(): dma_now(); return True
        d_try()
        if dq: return True
        if dst['rel']: a.wait(lg='all'); d_release(); return True
        d_try(True); assert dq
        return True
    while True:
        d_try()
        if not dq: break
        while dq: dq.pop(0)()
    if a.lg: a.wait(lg='all')
    d_release()
    for _ in range(P.POSTD):
        if can_arm(): dma_now()
    pub_try(True)
    assert pub['done'] == NPUB
    a.stamp('pub', lvl=2)
    tgt = len(bg) if KS == 14 else max(4*KS, min(len(bg), st8['bpos'] + P.NPRE))
    while st8['bpos'] < tgt:
        if not polled[0] and tgt - st8['bpos'] <= P.POLLB: poll_issue(); polled[0] = True
        d_step()
    if not polled[0]: poll_issue()
    a.stamp('dissued', lvl=2)
    def need_d(j1):
        while dst['next'] < j1 or dq:
            while ('D', min(dst['next'], 13), 3) not in fired: d_step()
            d_try(True)
            while dq: dq.pop(0)()
    while dst['next'] < chunks[0][3] or dq:
        d_try()
        if not dq:
            if h_pop(): continue
            d_try(True)
        while dq: dq.pop(0)()
    a.stamp('dread', lvl=2)
    RA = 2
    def red_setup():
        for d in range(1, 4): a('v_xor_b32 v%d, %d, v%d' % (DA+d, d*1024, VRD))
        for d in range(0, 4): a('v_add_u32 v%d, 65536, v%d' % (DA+4+d, DA+d if d else VRD))
        a('v_bfe_u32 v%d, v0, 4, 1' % (DA+8))
    def acc2(u, d): return vr(OWN + 4*u) if d == 0 else vr(12*u + (d-1)*4, 4, 'a')
    def red_write(u, d):
        off = (u*3 + d-1)*4096
        a.lds('ds_write_b128 v%d, %s offset:%d' % (DA + d + 4*(off//65536), acc2(u, d), off % 65536), ('rw', u))
    def red_items(u0, u1, q):
        us = [u0] + ([u1] if u1 is not None else [])
        it = []
        for n, u in enumerate(us):
            for d in range(1, 4):
                off = (u*3 + d-1)*4096
                it.append(lambda n=n, u=u, d=d, off=off: a.lds('ds_read_b128 %s, v%d offset:%d' % (vr(RT + 12*n + 4*(d-1)), VRD if off < 65536 else DA+4, off % 65536), ('rr', u)))
        S0, S1 = S_KW, S_DO
        it.append(lambda: a('s_mov_b32 s%d, s%d' % (S0, T_O0)) if u0 == 0 else a('s_mul_i32 s%d, s%d, 20480' % (S0, T_U+u0)))
        it.append(lambda: a('s_mul_i32 s%d, s%d, 20480' % (S1, T_U+u1)) if u1 is not None else a('s_mov_b32 s%d, 0x40000000' % S1))
        it.append(lambda: a('s_sub_u32 s%d, s%d, s%d' % (S1, S1, S0)))
        it.append(lambda: a('v_mul_lo_u32 v1, v%d, s%d' % (DA+8, S1)))
        it.append(lambda: a('v_add3_u32 v1, v1, v%d, s%d' % (VO, S0)))
        for n, u in enumerate(us):
            o = OWN + 4*u; r = RT + 12*n
            it.append(lambda u=u: a.wait(lg=('rr', u)))
            for i in range(4): it.append(lambda i=i, r=r: a('v_add_f32 v%d, v%d, v%d' % (r+i, r+i, r+4+i)))
            for i in range(4): it.append(lambda i=i, r=r, o=o: a('v_add_f32 v%d, v%d, v%d' % (o+i, o+i, r+8+i)))
            for i in range(4): it.append(lambda i=i, r=r, o=o: a('v_add_f32 v%d, v%d, v%d' % (o+i, o+i, r+i)))
            for p in range(2): it.append(lambda n=n, p=p, o=o: a('v_cvt_pk_bf16_f32 v%d, v%d, v%d' % (q + 2*n + p, o+2*p, o+2*p+1)))
        def fin():
            a('s_nop 1')
            a('v_permlane16_swap_b32 v%d, v%d' % (q, q+2))
            a('v_permlane16_swap_b32 v%d, v%d' % (q+1, q+3))
            a.vmem('buffer_store_dwordx4 %s, v1, %s, 0 offen%s' % (vr(q), sr(S_OUT), ['', ' sc1', ' nt', ' sc0 sc1'][P.OPOL]), 'o', 400)
        it.append(fin)
        return it
    wq = []; red = []; since = [99]; fin = []; setup = [False]
    for ci, (pt, u, j0, j1, endu) in enumerate(chunks):
        last = ci == len(chunks) - 1
        lim[0] = min(lidx[(u, j0)] + len(ring), lidx[(u, j1-1)] + 1 + LA())
        while h_pop(): pass
        if not last: lim[0] = min(lidx[(u, j0)] + len(ring), lidx[(chunks[ci+1][1], chunks[ci+1][3]-1)] + 1 + LA())
        need_d(j1)
        while ci == 0 and d_landed():
            d_try(True)
            while dq: dq.pop(0)()
        if wq and not setup[0]:
            need_d(14); a.wait(lg='all'); a('s_barrier'); red_setup(); setup[0] = True
        if len(fin) >= 2 and not wq and not red and fin[0] < 4:
            a.wait(lg='all'); a('s_barrier')
            red = red_items(fin[0], fin[1], OQ + fin[0]*2); del fin[:2]
        a.wait(vm=('h', u, j1-1), lg=[('dr', j) for j in range(j1)])
        n = 0
        for d in ((1, 2, 3, 0) if last else (0, 1, 2, 3)):
            for j in range(j0, j1):
                if not (P.NOMF and d): a.mfma(acc2(u, d), dreg(j, d*4, 4), hreg(u, j), '0' if j == 0 else acc2(u, d))
                n += 1; since[0] += 1
                if wq and since[0] >= 4 and n % 2 == 0: wq.pop(0)()
                elif n % P.HP == 1 and h_pop(): pass
                else:
                    if not dq and d_landed(): d_try(True); dq.pop(0)()
                    for _ in range(2):
                        if dq: dq.pop(0)()
                        elif red: red.pop(0)()
        if endu and pt == len(parts)-1:
            while wq: wq.pop(0)()
            wq = [lambda u=u, d=d: red_write(u, d) for d in range(1, 4)]; since[0] = 0; fin.append(u)
        if endu: a.stamp('u%d%d' % (pt, u), lvl=(1 if last or (u == 0 and pt == 0) or (u == nun-1) else 3))
    tail = list(fin)
    while red: red.pop(0)()
    wq.pop(0)(); a('s_nop 1'); wq.pop(0)(); a('s_nop 2'); wq.pop(0)()
    a.wait(lg='all'); a('s_barrier')
    a.raw('; tail units %s' % tail)
    while tail:
        for f in red_items(tail[0], tail[1] if len(tail) > 1 else None, OQ + (tail[0] % 4)*2): f()
        del tail[:2]
    a.stamp('end')
    if P.diag:
        a.wait(vm='all')
        a.stamp('end2', False, 0); a.stamp('end_rt', True, 0)
        a('s_getreg_b32 s98, hwreg(HW_REG_XCC_ID)'); a('v_writelane_b32 v255, s98, 63')
        a('v_writelane_b32 v255, s%d, 62' % T_CLS); a('v_writelane_b32 v255, s%d, 61' % T_K0)
        if P.PROBE >= 0:
            a('s_nop 1'); a('v_readlane_b32 s96, v255, %d' % (P.PROBE if cls == 0 else 0)); a('s_nop 3')
            a('s_add_u32 s96, s96, 4000')
            if P.PWG >= 0:
                a('s_cmp_lg_u32 s2, %d' % P.PWG); a('s_cbranch_scc1 L_end')
            a.label('L_probe_%s' % name)
            a('s_sleep 1'); a('s_memrealtime s[98:99]'); a('s_waitcnt lgkmcnt(0)')
            a('s_sub_u32 s97, s98, s96'); a('s_cmp_lt_i32 s97, 0'); a('s_cbranch_scc1 L_probe_%s' % name)
            a('s_endpgm')
        if P.DBGOUT:
            a('v_readlane_b32 s96, v255, 0'); a('v_readlane_b32 s97, v255, %d' % (a.nstamp-1)); a('s_nop 3')
            a('s_not_b32 s95, s96'); a('v_mov_b32 v2, s97'); a('v_mov_b32 v3, s95'); a('v_mov_b32 v1, 0')
            a('s_mov_b64 exec, 1')
            a('buffer_atomic_umax v2, v1, %s, 0 offen offset:4 sc1' % sr(S_DBG))
            a('buffer_atomic_umax v3, v1, %s, 0 offen offset:8 sc1' % sr(S_DBG))
            a('s_mov_b64 exec, -1')
            a('v_subrev_u32 v2, s96, v255'); a('v_lshlrev_b32 v3, 2, v0')
            a('s_lshl_b32 s95, s2, 2'); a('s_add_u32 s95, s95, s%d' % S_WAVE); a('s_cmp_eq_u32 s95, 404'); a('s_cselect_b32 s95, 4, 0x10000')
            a('s_mov_b64 exec, 0x7ffc')
            a('buffer_store_dword v2, v3, %s, s95 offen' % sr(S_DBG))
            a('s_mov_b64 exec, -1')
        a('s_mov_b32 s%d, 0x4000000' % (S_H+2))
        a('s_lshl_b32 s98, s2, 2'); a('s_add_u32 s98, s98, s%d' % S_WAVE); a('s_lshl_b32 s98, s98, 8')
        a('s_add_u32 s98, s98, %d' % (16 << 20))
        a('v_lshlrev_b32 v254, 2, v0')
        a('buffer_store_dword v255, v254, %s, s98 offen' % sr(S_H))
        a('s_waitcnt vmcnt(0)')
        a.raw('; nstamp %d cls %d' % (a.nstamp, code))
        if code == 0: TAIL['names'] = '; nstamp %d cls 0' % a.nstamp
        if P.diag == 2: a.raw('; realtime stamps')
    a('s_endpgm')
    for f in slow: f()
    a.label('L_codeend_%s' % name)

def jobs():
    nspec = [2, 2, 2, 1, 1, 2, 2, 1]
    tiles = [(s, g) for s in range(27) for g in range(9)]
    p1 = {x: [] for x in range(8)}; pos = 0
    for p in range(4):
        n0, n1 = 32 - nspec[2*p], 32 - nspec[2*p+1]
        mine = sorted(tiles[pos:pos+n0+n1], key=lambda t: (t[1], t[0])); pos += n0+n1
        p1[2*p] = [(0,) + t for t in mine[:n0]]; p1[2*p+1] = [(0,) + t for t in mine[n0:]]
    assert pos == 243
    st = 0
    for x in range(8):
        for i in range(nspec[x]):
            c = 2 if (x == 6 and i == 1) else 1
            p1[x].insert(0, (c, st, 9)); st += c+1
    assert st == 27
    p2 = {}; drot = {}; dupc = set()
    if P.ALIGN:
        for half in range(2):
            xs = [2*q + half for q in range(4)]
            s2 = [(x, i) for x in xs for i, j in enumerate(p1[x]) if j[0] == 1]
            assert len(s2) == 6
            extra6 = {3: s2[0], 4: s2[3]}; reg6 = {3: [s2[1], s2[4]], 4: [s2[2], s2[5]]}
            left = {si: list(range(120, 128)) for si in range(5)}
            spare = []
            for q, x in enumerate(xs):
                norm = sorted([i for i, j in enumerate(p1[x]) if j[0] != 1], key=lambda i: -p1[x][i][0])
                nsp = 2 - sum(1 for v in extra6.values() if v[0] == x)
                spare += [(x, norm.pop(0)) for _ in range(nsp)]
                for si in range(5):
                    mine = [c for c in reg6.get(si, []) if c[0] == x]
                    for r in range(6):
                        c = mine.pop() if mine else (x, norm.pop())
                        us = sorted(range(30*q, 30*q+30), key=lambda u: (abs((u//2) % 7 - 3), u))[r::6]
                        if p1[x][c[1]][0] == 1: us.append(left[si].pop())
                        p2[c] = (5*half + si, us); drot[c] = ((r + 3*si) % 7)*2
                assert not norm
            for si in (3, 4): p2[extra6[si]] = (5*half + si, left[si]); drot[extra6[si]] = ((6 + 3*si) % 7)*2; assert len(left[si]) == 6
            assert len(spare) == 6
            spare.sort(key=lambda c: c[0])
            for n_, c in enumerate(spare):
                si = n_ % 3; us = left[si][4*(n_//3):4*(n_//3)+4]
                p2[c] = (5*half + si, [us[0]] + us); dupc.add(c); drot[c] = ((6 + 3*si) % 7)*2
    else:
        nmat = [(7,6,7,6), (6,7,6,7), (7,6,6,7), (6,7,6,6), (6,6,7,6)]
        def pos_of(u):
            b = u//2
            return (b % 7) if b < 63 else 3.5
        for half in range(2):
            xs = [2*q + half for q in range(4)]
            avail = {x: sorted([i for i, j in enumerate(p1[x]) if j[0] != 1], key=lambda i, x=x: p1[x][i][0]) for x in xs}
            s2 = [(x, i) for x in xs for i, j in enumerate(p1[x]) if j[0] == 1]
            assert len(s2) == 6, s2
            six = {3: s2[0::2], 4: s2[1::2]}
            for si in range(5):
                ds = 5*half + si
                cus = []
                for q, x in enumerate(xs):
                    sp = [i for (xx, i) in six.get(si, []) if xx == x]
                    l = [(x, i, 6) for i in sp]
                    for _ in range(nmat[si][q] - len(sp)): l.append((x, avail[x].pop(), 5))
                    cus.append(l)
                extra = sum(c[2] for l in cus for c in l) - 128
                assert extra in (0, 2)
                u0 = 0
                for q, l in enumerate(cus):
                    n = sum(c[2] for c in l)
                    dup = 1 if (extra and nmat[si][q] == 7) else 0
                    us = list(range(u0, u0 + n - dup)); u0 += n - dup
                    us.sort(key=lambda u: (pos_of(u), u))
                    if dup: us.insert(0, us[0]); dupc.add((l[0][0], l[0][1]))
                    asg = {c: [] for c in l}
                    k = 0
                    for c in l:
                        if c[2] == 6: asg[c].append(us[k]); k += 1
                    for rd in range(5):
                        for c in l: asg[c].append(us[k]); k += 1
                    for n_, c in enumerate(l):
                        p2[(c[0], c[1])] = (ds, asg[c]); gd = min(P.GD, len(l)); drot[(c[0], c[1])] = ((n_ + si) % gd)*14//gd
                assert u0 == 128

    recs = []
    sch = SCH[P.SCHED]
    for wg in range(256):
        x, i = wg % 8, wg // 8
        c, s, g = p1[x][i]
        blk0 = g*7
        order = sch[(s + g) % len(sch)]
        v = VMAP[P.SCHED][(s + g) % len(sch)]
        if c == 0 and v: c = 2 + v
        assert sorted(order) == list(range(10))
        k0 = sum(order[i] << (4*i) for i in range(8)); k1 = order[8] | (order[9] << 4)
        if P.REV and c not in (1, 2): assert P.PUBS == 7 or (P.MID and all(int(c_) % 2 for c_ in str(P.PUBS))); k1 |= ((s // len(sch)) % 2) << 8
        if wg == 0: assert c == 1; k1 |= 1 << 9
        nn = 32 - nspec[x]
        l0 = 4*(i - nspec[x]) if c not in (1, 2) else 4*nn + 16*i
        k1 |= ((x % 2) << 10) | (l0 << 16)
        ds, us = p2[(x, i)]
        us = us + [us[-1]]*(6-len(us))
        recs.append((c, blk0*40960, s*128, k0, blk0*110592 + s*2048, (g*27 + s)*128, ds*128, drot[(x, i)]) + tuple(us) + (0x40000000 if (x, i) in dupc else us[0]*20480, k1))
    cover = [(r[6], u) for r in recs for u in r[(9 if r[14] == 0x40000000 else 8):8+(6 if r[0] == 1 else 5)]]
    assert len(cover) == 1280 and len(set(cover)) == 1280
    return recs

def build():
    a = Asm()
    hdr = open('standalone__glu_gated_geglu__prompt.s.ref').read().split('\n')[:8]
    for l in hdr: a.raw(l)
    a.raw('; @launch grid=(256,1,1) block=(256,1,1) lds=163840')
    a.raw('.amdgcn_target "amdgcn-amd-amdhsa--gfx950"'); a.raw('.text')
    a.raw('.globl %s\n.p2align 8\n.type %s,@function' % (KN, KN)); a.label(KN)
    setup_common(a)
    ns = a.nstamp
    for cls in [0] + list(range(3, 2 + len(VARS[P.SCHED]))) + [1, 2]:
        a.reset(); a.nstamp = ns
        gen_class(a, cls)
    a.label('L_end'); a('s_endpgm')
    a.raw('.p2align 6'); a.raw('.type jobtab,@object'); a.label('jobtab')
    for r in jobs(): a.raw('.long ' + ', '.join(str(int(x)) for x in r))
    a.raw('.size jobtab, %d' % (64*256))
    a.raw('''.section .rodata,"a"
.p2align 6
.amdhsa_kernel %s
  .amdhsa_next_free_vgpr 512
  .amdhsa_next_free_sgpr 102
  .amdhsa_accum_offset 256
  .amdhsa_group_segment_fixed_size 0
  .amdhsa_kernarg_size 56
  .amdhsa_user_sgpr_count 2
  .amdhsa_user_sgpr_kernarg_segment_ptr 1
  .amdhsa_system_sgpr_workgroup_id_x 1
  .amdhsa_float_denorm_mode_32 3
.end_amdhsa_kernel''' % KN)
    return '\n'.join(a.L) + '\n'

if __name__ == '__main__':
    out = sys.argv[1]
    for kv in sys.argv[2:]:
        k, v = kv.split('='); assert hasattr(P, k), k; setattr(P, k, int(v))
    txt = build()
    open(out, 'w').write(txt)
```

```python
import re, sys
src = open('s8.s').read()
KN = 'standalone__glu_gated_geglu__prompt_kernel'
def tiny(name, body, vg=32):
    code = '.globl %s\n.p2align 8\n.type %s,@function\n%s:\n%s\n    s_endpgm\n' % (name, name, name, body)
    desc = '''.p2align 6
.amdhsa_kernel %s
  .amdhsa_next_free_vgpr %d
  .amdhsa_next_free_sgpr 102
  .amdhsa_accum_offset %d
  .amdhsa_group_segment_fixed_size 0
  .amdhsa_kernarg_size 56
  .amdhsa_user_sgpr_count 2
  .amdhsa_user_sgpr_kernarg_segment_ptr 1
  .amdhsa_system_sgpr_workgroup_id_x 1
.end_amdhsa_kernel
''' % (name, vg, min(vg, 256))
    return code, desc
rec = '''    s_memrealtime s[10:11]
    s_cmp_lg_u32 s2, 0
    s_cbranch_scc1 L_rec_end
    s_load_dwordx2 s[4:5], s[0:1], 48
    s_mov_b32 s6, 0x4000000
    s_mov_b32 s7, 0x20000
    s_waitcnt lgkmcnt(0)
    v_mov_b32 v1, s10
    v_mov_b32 v2, 0x2000000
    buffer_store_dword v1, v2, s[4:7], 0 offen sc1
    s_waitcnt vmcnt(0)
L_rec_end:'''
wait = '''    s_cmp_lg_u32 s2, 0
    s_cbranch_scc1 L_wt_end
    s_load_dwordx2 s[4:5], s[0:1], 48
    s_mov_b32 s6, 0x4000000
    s_mov_b32 s7, 0x20000
    s_waitcnt lgkmcnt(0)
    v_mov_b32 v2, 0x2000000
    buffer_load_dword v1, v2, s[4:7], 0 offen sc1
    s_waitcnt vmcnt(0)
    v_readfirstlane_b32 s8, v1
    s_nop 3
    s_add_u32 s8, s8, 6000
    s_mov_b32 s12, 0
L_wt:
    s_add_u32 s12, s12, 1
    s_cmp_gt_u32 s12, 100000
    s_cbranch_scc1 L_wt_end
    s_sleep 1
    s_memrealtime s[10:11]
    s_waitcnt lgkmcnt(0)
    s_sub_u32 s9, s10, s8
    s_cmp_lt_i32 s9, 0
    s_cbranch_scc1 L_wt
L_wt_end:'''
def build(out, order, recvg=32, reclds=0, recgrid=1, recblk=64):
    L = {'rec': '; @launch kernel=rec_kernel grid=(%d,1,1) block=(%d,1,1) lds=%d' % (recgrid, recblk, reclds), 'main': '; @launch kernel=%s grid=(256,1,1) block=(256,1,1) lds=163840' % KN,
         'wait': '; @launch kernel=wait_kernel grid=(1,1,1) block=(64,1,1) lds=0', 'nop': '; @launch kernel=nop_kernel grid=(1,1,1) block=(64,1,1) lds=0'}
    s = src.replace('; @launch grid=(256,1,1) block=(256,1,1) lds=163840', '\n'.join(L[o] for o in order))
    codes = ''; descs = ''
    for nm, body, vg in (('rec', rec, recvg), ('wait', wait, 32), ('nop', '    s_nop 0', 32)):
        if nm in order:
            c, d = tiny(nm + '_kernel', body, vg); codes += c; descs += d
    s = s.replace('.section .rodata,"a"', codes + '.section .rodata,"a"') + descs
    open(out, 'w').write(s)
build('pl1.s', ['rec', 'main', 'wait'])
build('pl2.s', ['rec', 'main', 'wait'], 512, 163840, 256, 256)
build('pl3.s', ['main'])
build('pl4.s', ['nop', 'main'])
build('pl5.s', ['main', 'nop'])
build('pl6.s', ['nop', 'nop', 'nop', 'main'])
```

```python
import sys, math, struct

M, DM, DF = 2048, 640, 1728
XB, WB, OB = M*DM*2, DM*DF*2, M*DM*2
FLAG0 = 8 << 20
WSB = FLAG0 + 270*128
C1 = -2.0*math.sqrt(2.0/math.pi)*math.log2(math.e)
C2 = C1*0.044715
def f2u(x): return struct.unpack('<I', struct.pack('<f', x))[0]
KN = 'standalone__glu_gated_geglu__prompt_kernel'

class P:
    R = 0; SCHED = 7; PACE = 60; LOOK = 12; TOP = 9; PRO = 18; D = 4; PFCODE = 2; diag = 0; STAMPS = 1
    LLAT = 900; DLAT = 1100; SLAT = 1000
    PUBS = 7; POLLB = 9; HP = 3; SLEEP = 4; LA = 9; PREH = 0
    GD = 7; DSTART = 5; PBG = 64; EPACE = 100000; SPF = 0; SPF0 = 1; SPFN = 3; KD = 0; OPOL = 0; ELAG = 1; BPAIR = 2
    SVC = 68; LH = 500; LC = 1200; LC0 = 1500; LDC = 2600; OUT0 = 6; OUT = 10; DC = 8; DAT = 9; MINP = 48; LOOKMAX = 30; ALIGN = 0; DSTOP = 200; REV = 1; KS = 14; NPRE = 22; DR = 2; MID = 0; LA0 = 8; TS = 16; NORED = 0; CHN = 4; PF64 = 0; DLY = 0; DLYAT = 3; PDC = 0; TM = 7; TAT = -1; NTC = 0; SHARE = 1; PF2 = 0; POSTD = 0; ELOAD = 0; SB = 1234567; LS = 900; STAG = 0; EOUT = 8; ECOST = 20; DPF = 0; DMAX = 8; LPF = 1400; FAKEH = 0; NOMF = 0
    PROBE = -1; PWG = -1; DBGOUT = 0; TOUCH = 0

SCH = {1: [[0,2,1,3,6,4,5,7,8,9], [0,1,4,2,3,8,6,5,9,7], [1,3,0,2,7,5,4,6,8,9], [1,0,5,2,3,9,7,4,6,8]],
       2: [[0,1,2,3,4,6,5,7,8,9], [0,1,3,4,5,7,2,8,9,6], [1,0,4,5,2,8,3,9,6,7], [1,0,5,2,3,9,4,6,7,8]],
       3: [[0,2,1,6,3,4,5,7,8,9], [0,1,4,2,8,3,6,5,9,7], [1,3,0,7,2,5,4,6,8,9], [1,0,5,2,9,3,7,4,6,8]]}
SCH[4] = [[0,3,1,2,6,4,5,9,7,8], [1,0,4,2,3,7,5,6,8,9], [2,0,1,5,3,4,8,6,7,9]]
SCH[5] = [[0,2,1,5,3,4,8,6,7,9], [0,1,3,2,6,4,5,9,7,8], [1,0,4,2,3,7,5,6,8,9]]
SCH[6] = [[0,2,1,4,3,6,5,8,7,9], [1,0,3,2,5,4,7,6,9,8]]
SCH[7] = [[0,1,2,4,3,5,7,6,8,9], [0,2,3,1,5,4,6,8,7,9], [0,3,1,2,4,6,5,7,9,8]]
SCH[8] = [[0,1,2,3,5,4,7,6,9,8], [0,2,1,4,3,6,5,8,7,9]]
VARS = {7: [[0,1,3,6], [0,1,4,7], [0,1,5,8]], 8: [[0,1,3,4,6,8], [0,1,3,5,7]], 4: [[0,1,4,7], [0,2,5], [0,3,6]], 5: [[0,1,3,6], [0,2,4,7], [0,2,5]], 6: [[0,1,3,5,7], [0,2,4,6,8]], 1: [[0,1,4], [0,2,5]], 2: [[0,2,5]], 3: [[0,1,3], [0,2,4]]}
VMAP = {7: [0,1,2], 8: [0,1], 4: [0,1,2], 5: [0,1,2], 6: [0,1], 1: [0,1,0,1], 2: [0,0,0,0], 3: [0,1,0,1]}

class Asm:
    def __init__(s):
        s.L = []; s.reset()
    def reset(s):
        s.vm = []; s.lg = []; s.nstamp = 0; s.t = 0; s.mf = -100; s.sm = None; s.issued = set()
    def __call__(s, t, c=4): s.L.append('    ' + t); s.t += c
    def label(s, t): s.L.append(t + ':')
    def raw(s, t): s.L.append(t)
    def mfma(s, d, a_, b, c):
        s.t = max(s.t, s.mf + 16); s.mf = s.t
        s('v_mfma_f32_16x16x32_bf16 %s, %s, %s, %s' % (d, a_, b, c), 8)
    def vmem(s, t, tag, lat, c=4):
        s(t, c); prev = s.vm[-1][1] if s.vm else 0
        s.vm.append((tag, max(prev, s.t + lat)))
    def lds(s, t, tag): s(t); s.lg.append(tag); s.issued.add(tag)
    def vm_ready(s, tag):
        r = 0
        for x, t in s.vm:
            if x == tag: r = t
        return r
    def wait(s, vm=None, lg=None):
        parts = []
        if vm is not None:
            if vm == 'all': n = 0 if s.vm else None
            else:
                tags = vm if isinstance(vm, list) else [vm]
                idx = max([i for i, x in enumerate(s.vm) if x[0] in tags], default=-1)
                n = None if idx < 0 else len(s.vm) - 1 - idx
            if n is not None:
                n = min(n, 63); parts.append('vmcnt(%d)' % n)
                s.t = max(s.t, s.vm[len(s.vm)-1-n][1])
                s.vm = s.vm[len(s.vm)-n:] if n else []
        if lg is not None:
            if lg == 'all': n = 0 if s.lg else None
            else:
                tags = lg if isinstance(lg, list) else [lg]
                idx = max([i for i, x in enumerate(s.lg) if x in tags], default=-1)
                n = None if idx < 0 else len(s.lg) - 1 - idx
            if n is not None:
                n = min(n, 15); parts.append('lgkmcnt(%d)' % n); s.lg = s.lg[len(s.lg)-n:] if n else []
        if parts: s('s_waitcnt ' + ' '.join(parts))
    def stamp(s, name='', real=False, lvl=1):
        if not P.diag or lvl > P.STAMPS:
            s.raw('; mark %s est %d' % (name, s.t)); return
        s('%s s[98:99]' % ('s_memrealtime' if (real or (P.diag == 2 and name not in ('entry', 'end2'))) else 's_memtime'), 0); s('s_waitcnt lgkmcnt(0)', 0)
        s('v_writelane_b32 v255, s98, %d' % s.nstamp, 0)
        s.raw('; stamp %d %s est %d' % (s.nstamp, name, s.t)); s.nstamp += 1

def vr(b, n=4, p='v'): return '%s[%d:%d]' % (p, b, b+n-1)
def sr(b, n=4): return 's[%d:%d]' % (b, b+n-1)

S_X, S_WG, S_WU, S_WD, S_OUT, S_H, S_DBG = 20, 24, 28, 32, 36, 40, 44
S_WAVE, S_M0X, S_M0W, S_KW, S_T0, S_T1, S_HO, S_DO, S_HL, S_FV = 48, 49, 50, 51, 52, 53, 54, 55, 56, 57
S_RDY = 58; S_C = 62; S_TAB = 64; S_KX = 80; S_SPIN = 90; S_SP = 91; S_HS = 60; S_JO = 4
T_CLS, T_XO, T_ST, T_K0, T_HO, T_FL, T_DS, T_DR, T_U = [S_TAB+i for i in range(9)]
T_O0 = S_TAB+14; T_K1 = S_TAB+15
VGO, VZ = 8, 9
VXD = 10; VWD = 17; VDD = 19; XA = 23; WA = 29; DA = 32
VH, VHL, VHT, VPA, VPT, VPR, VRD, VO = 44, 45, 46, 47, 48, 49, 50, 51
XR = 52; RING = 6; ET = 100
def acc1(b): return 204 - 16*b
HB3 = [('a', 0), ('a', 56), ('v', 52)]; ACC2 = 112; OWN = 108; OQ = 132; RT = 8

class Lds:
    def __init__(s):
        s.free = list(range(10)); s.cur = None; s.fill = 4; s.live = {}; s.addr = {}
    def can(s, quad): return bool(s.free) if (quad or s.fill == 4) else True
    def alloc(s, key, quad):
        if quad:
            q = s.free.pop(0); s.live[q] = {key}; s.addr[key] = q*16384; return
        if s.fill == 4:
            s.cur = s.free.pop(0); s.fill = 0; s.live[s.cur] = {'open'}
        s.live[s.cur].add(key); s.addr[key] = s.cur*16384 + s.fill*4096; s.fill += 1
        if s.fill == 4: s.live[s.cur].discard('open')
    def close(s):
        if s.fill < 4:
            s.fill = 4; s.live[s.cur].discard('open'); s._chk(s.cur)
    def _chk(s, q):
        if not s.live[q]: del s.live[q]; s.free.append(q)
    def release(s, key):
        q = s.addr[key]//16384; s.live[q].discard(key); s._chk(q)

def setup_common(a):
    a.stamp('entry_rt', True, 0); a.stamp('entry', False, 0)
    a('s_cmp_ge_u32 s2, 256'); a('s_cbranch_scc1 L_end')
    a('s_load_dwordx8 s[4:11], s[0:1], 0')
    a('s_load_dwordx4 s[12:15], s[0:1], 32')
    a('s_load_dwordx2 s[16:17], s[0:1], 48')
    a('s_getpc_b64 s[18:19]'); a.label('L_pc')
    a('s_add_u32 s92, s18, jobtab-L_pc'); a('s_addc_u32 s93, s19, 0')
    a('s_lshl_b32 s3, s2, 6')
    a('s_load_dwordx16 %s, s[92:93], s3' % sr(S_TAB, 16))
    a('v_lshrrev_b32 v1, 6, v0'); a('v_lshlrev_b32 v%d, 7, v0' % VPR)
    a('v_and_b32 v0, 63, v0')
    a('v_readfirstlane_b32 s%d, v1' % S_WAVE)
    for b, sz in ((S_X, XB), (S_WG, WB), (S_WU, WB), (S_WD, WB), (S_OUT, OB), (S_H, WSB), (S_DBG, 256)):
        a('s_mov_b32 s%d, %d' % (b+2, sz)); a('s_mov_b32 s%d, 0x20000' % (b+3))
    a('s_lshl_b32 s%d, s%d, 10' % (S_M0X, S_WAVE))
    a('s_lshl_b32 s%d, s%d, 12' % (S_M0W, S_WAVE))
    a('s_mov_b32 s%d, 0x%08x' % (S_C, f2u(C2))); a('s_mov_b32 s%d, 0x%08x' % (S_C+1, f2u(C1)))
    l8, p8, m, g, r, c = 2, 3, 4, 5, 6, 7
    t0, t1 = ET, ET+1
    a('v_lshrrev_b32 v%d, 3, v0' % l8); a('v_and_b32 v%d, 7, v0' % p8)
    a('v_and_b32 v%d, 15, v0' % m); a('v_lshrrev_b32 v%d, 4, v0' % g)
    a('v_bfe_u32 v%d, v0, 2, 2' % r); a('v_and_b32 v%d, 3, v0' % c)
    a('v_mov_b32 v%d, 0' % VZ)
    a('s_lshl_b32 s%d, s%d, 3' % (S_T0, S_WAVE))
    a('v_add_u32 v%d, s%d, v%d' % (t0, S_T0, l8))
    a('v_bfe_u32 v%d, v%d, 1, 3' % (t1, t0))
    a('v_xor_b32 v%d, v%d, v%d' % (t1, t1, p8))
    a('v_mul_u32_u24 v%d, 1280, v%d' % (VXD, t0))
    a('v_lshl_add_u32 v%d, v%d, 4, v%d' % (VXD, t1, VXD))
    a('v_mul_u32_u24 v%d, 3456, v%d' % (t0, t0))
    a('s_and_b32 s%d, s%d, 1' % (S_T0, S_WAVE)); a('s_lshl_b32 s%d, s%d, 2' % (S_T0, S_T0))
    a('v_and_b32 v%d, 2, v%d' % (t1, l8))
    a('v_xor_b32 v%d, v%d, v%d' % (t1, t1, p8))
    a('v_xor_b32 v%d, s%d, v%d' % (VWD, S_T0, t1))
    a('v_lshl_add_u32 v%d, v%d, 4, v%d' % (VWD, VWD, t0))
    a('v_add_u32 v%d, %d, v%d' % (VWD+1, 32*3456, VWD))
    a('s_mul_i32 s%d, s%d, 448' % (S_T0, S_WAVE))
    a('v_add_u32 v%d, s%d, v%d' % (t0, S_T0, l8))
    a('v_mul_u32_u24 v%d, 1280, v%d' % (t0, t0))
    a('v_lshl_add_u32 v%d, v%d, 4, v%d' % (VDD, t1, t0))
    a('v_xor_b32 v%d, 64, v%d' % (VDD+1, VDD))
    a('v_add_u32 v%d, %d, v%d' % (VDD+1, 8*1280, VDD+1))
    a('v_lshrrev_b32 v%d, 1, v%d' % (t0, m))
    a('v_xor_b32 v%d, v%d, v%d' % (t0, t0, g))
    a('v_lshlrev_b32 v%d, 4, v%d' % (t0, t0))
    a('v_lshl_add_u32 v%d, v%d, 7, v%d' % (XA, m, t0))
    a('v_xor_b32 v%d, 64, v%d' % (XA+1, XA))
    a('v_lshrrev_b32 v%d, 1, v%d' % (t0, r))
    a('v_and_b32 v%d, 1, v%d' % (t1, g))
    a('v_lshl_or_b32 v%d, v%d, 1, v%d' % (t0, t1, t0))
    a('v_xor_b32 v%d, s%d, v%d' % (t0, S_WAVE, t0))
    a('v_lshlrev_b32 v%d, 5, v%d' % (t0, t0))
    a('v_lshl_add_u32 v%d, v%d, 3, v%d' % (t0, c, t0))
    a('v_lshl_add_u32 v%d, v%d, 3, v%d' % (t1, g, r))
    a('v_lshl_add_u32 v%d, v%d, 7, v%d' % (WA, t1, t0))
    for w in (1, 2):
        a('v_add_u32 v%d, %d, v%d' % (XA+2*w, w*65536, XA)); a('v_add_u32 v%d, %d, v%d' % (XA+2*w+1, w*65536, XA+1))
        a('v_add_u32 v%d, %d, v%d' % (WA+w, w*65536, WA))
    a('v_add_u32 v%d, s%d, v%d' % (DA, S_M0W, WA))
    for d in range(1, 4): a('v_xor_b32 v%d, %d, v%d' % (DA+d, d*32, DA))
    for w in (1, 2):
        for d in range(4): a('v_add_u32 v%d, %d, v%d' % (DA+4*w+d, w*65536, DA+d))
    a('s_waitcnt lgkmcnt(0)')
    for b, src, off, sz in ((S_X, 4, T_XO, XB), (S_WG, 6, T_ST, WB), (S_WU, 8, T_ST, WB)):
        a('s_add_u32 s%d, s%d, s%d' % (b, src, off)); a('s_addc_u32 s%d, s%d, 0' % (b+1, src+1))
        a('s_sub_u32 s%d, %d, s%d' % (b+2, sz, off))
    a('s_bitcmp1_b32 s%d, 8' % T_K1)
    a('s_cselect_b32 s%d, %d, 0' % (S_T0, 6*40960)); a('s_mov_b32 s%d, 40960' % S_T1); a('s_cselect_b32 s%d, %d, s%d' % (S_T1, -40960, S_T1))
    a('s_cselect_b32 s%d, %d, 0' % (S_HO, 6*110592)); a('s_mov_b32 s%d, 110592' % S_HS); a('s_cselect_b32 s%d, %d, s%d' % (S_HS, -110592, S_HS))
    a('v_add_u32 v%d, s%d, v%d' % (VXD, S_T0, VXD))
    for b in range(1, 7): a('v_add_u32 v%d, s%d, v%d' % (VXD+b, S_T1, VXD+b-1))
    a.stamp('ptrs')
    a('s_cmp_eq_u32 s%d, 1' % T_CLS); a('s_cbranch_scc1 L_cls1')
    for c in range(2, 2 + len(VARS[P.SCHED])): a('s_cmp_eq_u32 s%d, %d' % (T_CLS, c)); a('s_cbranch_scc1 L_cls%d' % c)

def setup_ptrs(a):
    for b, src in ((S_WD, 10), (S_OUT, 12), (S_DBG, 14), (S_H, 16)):
        a('s_mov_b64 s[%d:%d], s[%d:%d]' % (b, b+1, src, src+1))

def setup_late(a, cls):
    l8, p8, m, g, r, c = 2, 3, 4, 5, 6, 7
    t0, t1, t2 = ET, ET+1, ET+2
    for q in range(2): a('v_add_u32 v%d, s%d, v%d' % (VDD+q, T_DS, VDD+q))
    for q in range(2): a('v_add_u32 v%d, %d, v%d' % (VDD+2+q, 16*1280, VDD+q))
    a('v_and_b32 v%d, 1, v%d' % (t0, g))
    a('v_mul_u32_u24 v%d, 55296, v%d' % (t0, t0))
    a('v_lshrrev_b32 v%d, 1, v%d' % (t1, g))
    a('v_lshl_add_u32 v%d, v%d, 8, v%d' % (t0, t1, t0))
    a('v_lshl_add_u32 v%d, v%d, 4, v%d' % (t0, m, t0))
    a('s_lshl_b32 s%d, s%d, 9' % (S_T0, S_WAVE)); a('s_add_u32 s%d, s%d, s%d' % (S_T0, S_T0, T_HO))
    a('v_add_u32 v%d, s%d, v%d' % (VH, S_T0, t0))
    a('s_mul_i32 s%d, s%d, 14336' % (S_T0, S_WAVE))
    a('v_lshlrev_b32 v%d, 4, v0' % t0)
    a('v_add_u32 v%d, s%d, v%d' % (VHL, S_T0, t0))
    a('v_add_u32 v%d, s%d, v%d' % (VRD, S_M0X, t0))
    a('s_cmp_eq_u32 s%d, 3' % S_WAVE)
    a('s_cselect_b32 s%d, 5, 6' % S_T1)
    a('s_movk_i32 s%d, 14336' % S_HL); a('s_cselect_b32 s%d, 12288, s%d' % (S_HL, S_HL))
    a('s_lshl_b32 s%d, s%d, 10' % (S_T0, T_DR))
    for j in range(14):
        a('s_cmp_ge_u32 s%d, s%d' % (S_T0, S_HL)); a('s_cselect_b32 s%d, 0x2000000, s%d' % (S_JO+j, S_T0))
        if j < 13:
            a('s_add_u32 s%d, s%d, 1024' % (S_T0, S_T0)); a('s_cmp_eq_u32 s%d, 14336' % S_T0); a('s_cselect_b32 s%d, 0, s%d' % (S_T0, S_T0))
    a('v_mul_u32_u24 v%d, 1280, v%d' % (t0, m))
    a('v_lshl_add_u32 v%d, v%d, 4, v%d' % (t0, t1, t0))
    a('s_lshl_b32 s%d, s%d, 5' % (S_T0, S_WAVE)); a('s_add_u32 s%d, s%d, s%d' % (S_T0, S_T0, T_DS))
    a('v_add_u32 v%d, s%d, v%d' % (VO, S_T0, t0))
    a('v_mov_b32 v%d, s%d' % (t0, T_U))
    for i in range(1, 6):
        a('v_cmp_eq_u32 vcc, %d, v%d' % (i, l8))
        a('v_mov_b32 v%d, s%d' % (t2, T_U+i)); a('s_nop 0')
        a('v_cndmask_b32 v%d, v%d, v%d, vcc' % (t0, t0, t2))
    a('v_lshrrev_b32 v%d, 1, v%d' % (t0, t0))
    a('v_mul_u32_u24 v%d, 37, v%d' % (t2, t0))
    a('v_lshrrev_b32 v%d, 8, v%d' % (t2, t2))
    a('v_mul_u32_u24 v%d, 7, v%d' % (VPT, t2))
    a('v_sub_u32 v%d, v%d, v%d' % (VPT, t0, VPT))
    if P.MID:
        a('v_sad_u32 v%d, v%d, 3, 0' % (VPT, VPT)); a('v_lshlrev_b32 v%d, 1, v%d' % (VPT, VPT))
        a('v_cmp_ne_u32 vcc, 9, v%d' % t2); a('s_nop 1'); a('v_cndmask_b32 v%d, 0, v%d, vcc' % (VPT, VPT))
    a('v_mul_u32_u24 v%d, 27, v%d' % (t2, t2))
    a('v_min_u32 v%d, s%d, v%d' % (t0, S_T1, p8))
    a('s_mul_i32 s%d, s%d, 7' % (S_T0, S_WAVE))
    a('v_add3_u32 v%d, v%d, v%d, s%d' % (t0, t0, t2, S_T0))
    a('v_lshlrev_b32 v%d, 7, v%d' % (t0, t0))
    a('v_add_u32 v%d, %d, v%d' % (VPA, FLAG0, t0))
    if P.DPF:
        a('s_lshr_b32 s%d, s%d, 16' % (S_T0, T_K1)); a('s_mul_i32 s%d, s%d, %d' % (S_T1, S_WAVE, 1 if cls == 0 else 4)); a('s_add_u32 s%d, s%d, s%d' % (S_T0, S_T0, S_T1))
        a('s_lshl_b32 s%d, s%d, 6' % (S_T0, S_T0))
        a('s_bfe_u32 s%d, s%d, 0x1000a' % (S_T1, T_K1)); a('s_mul_i32 s%d, s%d, 640' % (S_SP, S_T1))
        for n in range(1 if cls == 0 else 4):
            a('v_add_u32 v%d, s%d, v0' % (t0, S_T0))
            if n: a('v_add_u32 v%d, %d, v%d' % (t0, 64*n, t0))
            a('v_mul_u32_u24 v%d, 13108, v%d' % (t2, t0)); a('v_lshrrev_b32 v%d, 16, v%d' % (t2, t2))
            a('v_mul_u32_u24 v%d, 640, v%d' % (t2, t2))
            a('v_lshl_add_u32 v%d, v%d, 7, v%d' % (248+n if cls else 252, t0, t2))
    a('s_add_u32 s%d, s%d, %d' % (T_FL, T_FL, FLAG0))
    a('s_lshl_b32 s%d, s%d, 2' % (S_T0, S_WAVE)); a('s_add_u32 s%d, s%d, s%d' % (T_FL, T_FL, S_T0))

TAIL = {}
def gen_class(a, code):
    cls = code if code < 3 else 0
    var = code - 2 if code >= 3 else 0
    coldpos = VARS[P.SCHED][var] if cls == 0 else [0]
    name = 'c%d' % code
    nblk, nstrip, nun = ((7, 1, 5), (1, 2, 6), (1, 3, 5))[cls]
    R = P.R if cls == 0 else 0
    NPUB = nblk*nstrip
    lds = Lds()
    nst = [0]
    eord = [3, 2, 4, 1, 5, 0, 6] if (cls == 0 and P.MID) else list(range(NPUB))
    dd = [('a', 160+16*i, 0) for i in range(6)] + [('v', 220, 0), ('v', 236, 0), ('a', 144, 0)]
    dd += [('v', acc1(b), 0) for b in range(NPUB, 5)] + [('v', acc1(b), n+1) for n, b in enumerate(eord) if b < 5]
    assert len(dd) == 14
    def dreg(j, o, n): return vr(dd[j][1] + o, n, dd[j][0])
    def wset(st, s): return 16*((s*nstrip + st) % (max(R+1, 2) if cls == 0 else 6))
    def Wt(st, s): return [('W', st, s, ks, mat) for ks in range(2) for mat in range(2)]
    phases = []
    for s in range(10 - R):
        it = []; tl = []
        for st in range(nstrip):
            tl += Wt(st, s)
            if st == 0: tl += [('X', b, s) for b in range(nblk)]
            for b in range(nblk):
                for h in range(2):
                    it.append(dict(acc=acc1(st*nblk + b) + h*8, w=(st, s), x=('X', b, s), h=h, first=(s == 0), rev=False))
        phases.append(dict(it=it, tiles=tl))
    if R:
        ss = list(range(10 - R, 10))
        b = 0
        while b < nblk:
            bl = [0] if b == 0 else list(range(b, min(nblk, b + P.BPAIR)))
            it = []; tl = []
            for bb in bl:
                for s in ss: tl += (Wt(0, s) if bb == 0 else []) + [('X', bb, s)]
                for h in range(2):
                    for i, s in enumerate(ss):
                        it.append(dict(acc=acc1(bb) + h*8, w=(0, s), x=('X', bb, s), h=h, first=False, rev=(i % 2 == 1)))
                    if h == 0 and P.ELAG and bb > 0: it.append(dict(epi=bb-1))
                if not P.ELAG or bb == nblk-1: it.append(dict(epi=bb, nop=True))
            phases.append(dict(it=it, tiles=tl)); b = bl[-1] + 1
    else:
        phases[-1]['it'] += [dict(epi=i, nop=(n == 0)) for n, i in enumerate(eord)]
    crit = [t for ph in phases for t in ph['tiles']]
    n = 0; items = []; groups = []; seenw = set()
    for pi, ph in enumerate(phases):
        n += len(ph['tiles']); ph['end'] = n
        for x in ph['it']:
            x['ph'] = pi; items.append(x)
            if 'epi' not in x:
                x['id'] = len(groups); groups.append(x); x['newW'] = x['w'] not in seenw; seenw.add(x['w'])
    bg = [('D', j, q) for j in range(14) for q in range(4)]
    dst = dict(next=0, avail=0, rel=[], relb=[])
    st8 = dict(pos=0, bpos=0, last=-10000, kw=None, armed=None, limit=0, kxn=0, epi=False, ph=0)
    def need_kx(s):
        while st8['kxn'] <= s:
            i = st8['kxn']
            a('s_bfe_u32 s%d, s%d, 0x%x' % (S_KX+i, T_K0 if i < 8 else T_K1, (4 << 16) | (4*(i % 8))))
            a('s_lshl_b32 s%d, s%d, 7' % (S_KX+i, S_KX+i))
            st8['kxn'] += 1
    dat = str(P.DAT); dcpos = phases[int(dat[var % len(dat)])]['end'] if cls == 0 else len(crit)
    def dc_due(): return not P.DPF and st8['pos'] >= dcpos and st8['bpos'] < P.DC
    pfd = [False]
    def dpf_try():
        if not P.DPF or pfd[0] or st8['armed'] or st8['pos'] < (dcpos if cls == 0 else phases[5]['end']): return False
        if cls == 0 and outstanding() > 3: return True
        pfd[0] = True
        for n in range(1 if cls == 0 else 4):
            for i in range(8):
                comp.append(max([a.t + P.LPF, comp[-1] + 30, comp[-8] + P.LPF]))
            a.vmem('buffer_load_dword v254, v%d, %s, s%d offen' % (248+n if cls else 252, sr(S_WD), S_SP), 'pf', comp[-1] - a.t)
        st8['last'] = a.t
        return True
    def crit_ok(force=False): return st8['pos'] < min(len(crit), st8['limit']) and lds.can(False) and (force or not dc_due())
    def bg_ok():
        if st8['bpos'] >= len(bg): return False
        done = st8['pos'] >= len(crit)
        if not done and not dc_due(): return False
        if done: lds.close()
        if bg[st8['bpos']][2] != 0: return True
        return bool(dst['relb']) or len(lds.free) > 0
    def can_arm(force=False): return not st8['armed'] and (crit_ok(force) or bg_ok())
    def arm(force=False):
        if crit_ok(force): t = crit[st8['pos']]; st8['pos'] += 1
        else: t = bg[st8['bpos']]; st8['bpos'] += 1
        if t[0] == 'W':
            _, st, s, ks, mat = t
            if st8['kw'] != (st, s):
                need_kx(s)
                a('s_mul_i32 s%d, s%d, 1728' % (S_KW, S_KX+s))
                if st: a('s_add_u32 s%d, s%d, %d' % (S_KW, S_KW, st*128))
                st8['kw'] = (st, s)
            lds.alloc(t, False)
            a('s_add_u32 m0, s%d, %d' % (S_M0X, lds.addr[t]))
            ins = 'buffer_load_dwordx4 v%d, %s, s%d offen lds' % (VWD+ks, sr(S_WU if mat else S_WG), S_KW)
        elif t[0] == 'X':
            _, b, s = t
            need_kx(s); lds.alloc(t, False)
            a('s_add_u32 m0, s%d, %d' % (S_M0X, lds.addr[t]))
            ins = 'buffer_load_dwordx4 v%d, %s, s%d offen lds' % (VXD+b, sr(S_X), S_KX+s)
        else:
            _, j, q = t
            if q == 0:
                if dst['relb']:
                    lds.release(('D', dst['relb'].pop(0))); lds.free.insert(0, lds.free.pop())
                lds.alloc(('D', j), True); a('s_mul_i32 s%d, s%d, 40' % (S_DO, S_JO+j))
            a('s_add_u32 m0, s%d, %d' % (S_M0W, lds.addr[('D', j)] + q*1024))
            ins = 'buffer_load_dwordx4 v%d, %s, s%d offen lds' % (VDD+q, sr(S_WD), S_DO)
        st8['armed'] = (ins, t, P.DLAT if t[0] == 'D' else P.LLAT)
    fired = set(); comp = []
    def lat_of(t):
        if t[0] == 'D': return P.LDC if (4*t[1] + t[2] < P.DC and not P.DPF) else P.LH
        if P.REV and t[0] == 'X' and t[1] >= 4: return P.LH
        return (P.LC0 if t[2] == 0 else P.LC) if t[2] in coldpos else P.LH
    def outstanding(): return sum(1 for c in comp[-24:] if c > a.t)
    def fire():
        ins, t, lat = st8['armed']; st8['armed'] = None
        if len(comp) >= 12: a.t = max(a.t, comp[-12])
        L = lat_of(t)
        if cls == 0 and L > P.LH and (P.NTC >> 'WXD'.index(t[0])) & 1: ins = ins.replace(' lds', ' nt lds')
        c = max([a.t + L] + ([comp[-1] + P.SVC] if comp else []) + ([comp[-8] + L] if len(comp) >= 8 else []))
        comp.append(c)
        a.vmem(ins, t, c - a.t, P.ECOST if st8['epi'] else 4); st8['last'] = a.t; fired.add(t)
    def flush_armed():
        if st8['armed']: a('s_nop 0'); fire()
    def dma_now(n=1, force=False):
        flush_armed()
        for _ in range(n):
            assert can_arm(force), (st8, lds.free, lds.live)
            arm(force); a('s_nop 0'); fire()
    def may_issue():
        if a.t - st8['last'] < P.MINP - 20: return False
        if cls == 0 and st8['pos'] >= len(crit) and st8['bpos'] < P.DC + 4 and a.t - st8['last'] < P.PDC: return False
        if cls: return True
        if P.ELOAD and (st8['epi'] or st8.get('stop')): return st8['bpos'] < P.DMAX and outstanding() < P.EOUT and a.t - st8['last'] >= P.ELOAD
        if st8['epi'] or st8.get('stop') or st8['bpos'] >= P.DMAX: return False
        return outstanding() < P.OUT
    rq = []; dq = []
    def d_release():
        for j in list(dst['rel']):
            if ('dr', j) not in a.lg:
                dst['rel'].remove(j)
                if st8['pos'] >= len(crit): lds.release(('D', j))
                else: dst['relb'].append(j)
    def d_try(force=False):
        d_release()
        j = dst['next']
        if dq or j >= 14 or dd[j][2] > nst[0] or ('D', j, 3) not in fired: return
        if not force and a.vm_ready(('D', j, 3)) > a.t: return
        ad = lds.addr[('D', j)]; w = ad//65536
        dq.append(lambda: a.wait(vm=('D', j, 3)))
        for d in range(4):
            for t in range(2):
                def f(d=d, t=t):
                    a.lds('ds_read_b64_tr_b16 %s, v%d offset:%d' % (dreg(j, d*4 + t*2, 2), DA+4*w+d, ad - w*65536 + t*512), ('dr', j))
                    if d == 3 and t == 1: dst['rel'].append(j)
                dq.append(f)
        dst['next'] += 1
    pub = dict(done=0, stores=[], tg=([int(c) for c in str(P.PUBS)] if cls == 0 else [nstrip]), n=0)
    def flag_atomic(val, reg):
        a('s_mov_b32 s%d, %d' % (reg, val))
        for st in range(nstrip):
            a('s_atomic_umax s%d, s[%d:%d], s%d%s' % (reg, S_H, S_H+1, T_FL, ' offset:%d' % (128*st) if st else ''))
    def pub_try(force=False):
        if not pub['tg']: return False
        ok = [cnt for cnt in pub['stores'] if a.vm_ready(('hs', cnt)) <= a.t or force]
        if not ok or max(ok) < pub['tg'][0]: return False
        c = max(ok)
        a.wait(vm=('all' if c == NPUB else ('hs', c)))
        flag_atomic(c if cls == 0 else 1, [0, 1, 3, 96, 97][pub['n']] if c < NPUB else S_FV); pub['n'] += 1
        pub['done'] = c; pub['stores'] = [x for x in pub['stores'] if x > c]
        pub['tg'] = [x for x in pub['tg'] if x > c]
        a.raw('; publish %d est %d' % (c, a.t))
        return True
    def xread(g, ks):
        ad = lds.addr[g['x']] + g['h']*2048; w = ad//65536
        a.lds('ds_read_b128 %s, v%d offset:%d' % (vr(XR + (g['id'] % RING)*8 + ks*4), XA+2*w+ks, ad - w*65536), ('x', g['id'], ks))
    def wreg(g, mat, ks): return wset(*g['w']) + ks*8 + mat*4
    def wread(g, mat, ks, tt):
        t = ('W',) + g['w'] + (ks, mat); ad = lds.addr[t]; w = ad//65536
        a.lds('ds_read_b64_tr_b16 %s, v%d offset:%d' % (vr(wreg(g, mat, ks) + tt*2, 2, 'a'), WA+w, ad - w*65536 + tt*512), t + (tt,))
    def order(g): return ((1,0),(1,1),(0,0),(0,1)) if g['rev'] else ((0,0),(0,1),(1,0),(1,1))
    qph = [0]; lastrd = [-1000]; spf = [0]
    def queue_reads(g):
        if g['ph'] > qph[0]:
            qph[0] = g['ph']
            for i in range(P.KD): rq.append(('f', lambda: a.lds('ds_read_b32 v253, v%d' % XA, 'dummy')))
            rq.append(('bar', g['ph']))
        W = lambda mk: [('f', lambda tt=tt: wread(g, mk[0], mk[1], tt)) for tt in range(2)]
        X = lambda ks: [('f', lambda: xread(g, ks))]
        o = order(g)
        if g['newW']: rq.extend(W(o[0]) + X(0) + W(o[1]) + X(1) + W(o[2]) + W(o[3]))
        else: rq.extend(X(0) + X(1))
    def set_limit(i):
        st8['ph'] = i
        st8['limit'] = phases[i+1]['end'] + (P.LOOKMAX if cls == 0 else P.LOOK) if i+1 < len(phases) else len(crit)
    def touch():
        a('v_lshlrev_b32 v252, %d, v%d' % (P.TS - 7, VPR))
        for i, srd in enumerate((S_WD, S_OUT, S_H)):
            if (P.TM >> i) & 1: a.vmem('buffer_load_dword v254, v252, %s, 0 offen' % sr(srd), 'pf', P.LLAT)
    def barrier(pi, extra=[]):
        flush_armed()
        if pi < len(phases):
            while st8['pos'] < phases[pi]['end']: dma_now(1, True)
            need = max(a.vm_ready(t) for t in phases[pi]['tiles'])
            if cls:
                while st8['pos'] < phases[pi]['end'] + P.TOP and crit_ok(): dma_now()
            else:
                o = P.OUT if pi else P.OUT0
                while can_arm() and need > a.t and comp[-o] <= need + 1: a.t = max(a.t, comp[-o]); dma_now()
        if pi == 9 - R: check_go()
        real = [x for x in a.lg if x != 'dummy']
        a.wait(vm=(phases[pi]['tiles'] if pi < len(phases) else []) + extra, lg=real)
        d_release()
        a('s_barrier')
        for j in dst['relb']: lds.release(('D', j))
        dst['relb'] = []
        if pi > 0:
            for t in phases[pi-1]['tiles']: lds.release(t)
        if pi < len(phases): set_limit(pi)
        a.stamp('b%d' % pi, lvl=(2 if pi not in (0, 7, 8, 9) else 1))
        if P.SPF and pi >= P.SPF0:
            if spf[0] == 0:
                a('s_mul_i32 s%d, s2, 8704' % S_SP); a('s_lshl_b32 s%d, s%d, 7' % (S_T0, S_WAVE)); a('s_add_u32 s%d, s%d, s%d' % (S_SP, S_SP, S_T0))
            for _ in range(P.SPFN):
                if spf[0] < 17: a('s_buffer_load_dword s%d, %s, s%d offset:%d' % (S_SPIN, sr(S_WD), S_SP, spf[0]*512)); spf[0] += 1
        if P.TOUCH in (6, 7) and pi == (max(0, coldpos[-1] - 2) if P.TAT < 0 else P.TAT): touch()
        if P.DLY and cls == 0 and pi == P.DLYAT: a('s_sleep %d' % P.DLY)
        if P.TOUCH == 4 and pi == coldpos[-1] - 2:
            a('v_lshlrev_b32 v252, 20, v0')
            for srd in (S_WD, S_OUT, S_H): a.vmem('buffer_load_dword v254, v252, %s, 0 offen' % sr(srd), 'pf', P.LLAT)
        if P.PF2 and pi == P.PF2 and cls == 0:
            a.label('L_pf2_%s' % name)
            for lo, hi in ([('L_pf2_c0', 'L_codeend_c0')] if code == 0 else [('L_pf2_%s' % name, 'L_codeend_%s' % name), ('L_tail', 'L_codeend_c0')]):
                a('s_add_u32 s92, s18, %s-L_pc' % lo); a('s_addc_u32 s93, s19, 0')
                a('s_mov_b32 s94, %s-%s' % (hi, lo)); a('s_mov_b32 s95, 0x20000')
                a('v_lshrrev_b32 v252, 1, v%d' % VPR)
                a.vmem('buffer_load_dword v254, v252, s[92:95], 0 offen', 'pf', P.LH)
        if pi == 7 - R: a.vmem('buffer_load_dword v%d, v%d, %s, 0 offen sc1' % (VGO, VZ, sr(S_DBG)), 'go', P.LLAT)
    def rq_pop(force=True):
        it = rq[0]
        if it[0] == 'bar':
            if not force and a.t - lastrd[0] < 70: return False
            rq.pop(0); barrier(it[1]); return True
        rq.pop(0); it[1](); lastrd[0] = a.t; return True
    def gap(budget=2):
        n = 0
        if st8['armed']: fire(); n += 1
        while rq and n < budget and (n == 0 or len(rq) > 3):
            if not rq_pop(False): break
            n += 1
        if n < budget and not dpf_try() and can_arm() and may_issue(): arm(); n += 1
        if n == 0 and pub_try(): return
        if n < budget and not (rq and rq[0][0] == 'bar') and not (st8['epi'] and R):
            d_try()
            if dq: dq.pop(0)(); n += 1
    slow = []
    def check_go():
        a.wait(vm='go')
        lab = 'L_go_%s' % name
        a('v_readfirstlane_b32 s%d, v%d' % (S_T0, VGO)); a('s_nop 0')
        a('s_cmp_eq_u32 s%d, 0' % S_T0); a('s_cbranch_scc1 %ss' % lab)
        a.label(lab)
        def emit():
            a.label(lab + 's')
            a('s_waitcnt lgkmcnt(0)')
            a('s_mov_b32 s%d, 0' % S_SPIN)
            a.label(lab + 'w')
            a('s_sleep 2')
            a('buffer_load_dword v1, v%d, %s, 0 offen sc1' % (VZ, sr(S_DBG)))
            a('s_waitcnt vmcnt(0)')
            a('v_readfirstlane_b32 s%d, v1' % S_T0)
            a('s_add_u32 s%d, s%d, 1' % (S_SPIN, S_SPIN)); a('s_cmp_gt_u32 s%d, 0x80000' % S_SPIN); a('s_cbranch_scc1 %s' % lab)
            a('s_cmp_eq_u32 s%d, 0' % S_T0); a('s_cbranch_scc1 %sw' % lab)
            a('s_branch %s' % lab)
        slow.append(emit)
    lastn = [0]; pend = []
    def epilogue(n, nop):
        st8['epi'] = True
        ab = acc1(n); hoff = n*110592 if cls == 0 else n*2048
        if nop:
            a('s_nop 7')
            if P.STAG and cls == 0:
                for w in (1, 2, 3):
                    a('s_cmp_lt_u32 s%d, %d' % (S_WAVE, w)); a('s_cbranch_scc1 L_stag_%s' % name); a('s_nop %d' % (P.STAG-1))
                a.label('L_stag_%s' % name)
        T = ET
        G = [ab + h*8 + 2*p for h in range(2) for p in range(2)]
        def em(t, c=4): a(t, c); gap(1)
        for i in range(4): em('v_pk_mul_f32 %s, %s, %s' % (vr(T+2*i, 2), vr(G[i], 2), vr(G[i], 2)))
        for i in range(4): em('v_pk_fma_f32 %s, %s, s[%d:%d], s[%d:%d] op_sel:[0,0,1] op_sel_hi:[1,0,1]' % (vr(T+2*i, 2), vr(T+2*i, 2), S_C, S_C+1, S_C, S_C+1))
        for i in range(4): em('v_pk_mul_f32 %s, %s, %s' % (vr(T+2*i, 2), vr(T+2*i, 2), vr(G[i], 2)))
        for i in range(8): em('v_exp_f32 v%d, v%d' % (T+i, T+i), 8)
        for i in range(4): em('v_pk_add_f32 %s, %s, 1.0 op_sel_hi:[1,0]' % (vr(T+2*i, 2), vr(T+2*i, 2)))
        for i in range(8): em('v_rcp_f32 v%d, v%d' % (T+i, T+i), 8)
        for i in range(4): em('v_pk_mul_f32 %s, %s, %s' % (vr(T+2*i, 2), vr(T+2*i, 2), vr(G[i], 2)))
        for i in range(4): em('v_pk_mul_f32 %s, %s, %s' % (vr(T+2*i, 2), vr(T+2*i, 2), vr(G[i]+4, 2)))
        for i in range(4): em('v_cvt_pk_bf16_f32 v%d, v%d, v%d' % (ab+i, T+2*i, T+2*i+1))
        flush_armed()
        a('s_nop 1')
        a('v_permlane16_swap_b32 v%d, v%d' % (ab, ab+2))
        a('v_permlane16_swap_b32 v%d, v%d' % (ab+1, ab+3))
        pend.append(n)
        if cls or str(nst[0] + len(pend)) in str(P.SB):
            for m in pend:
                if cls: a('s_mov_b32 s%d, %d' % (S_HO, m*2048))
                else:
                    a('s_mul_i32 s%d, s%d, %d' % (S_T0, S_HS, m - lastn[0])); a('s_add_u32 s%d, s%d, s%d' % (S_HO, S_HO, S_T0)); lastn[0] = m
                nst[0] += 1
                comp.append(max(a.t + P.LS, comp[-1] + P.SVC))
                a.vmem('buffer_store_dwordx4 %s, v%d, %s, s%d offen sc1' % (vr(acc1(m)), VH, sr(S_H), S_HO), ('hs', nst[0]), max(P.SLAT, comp[-1] - a.t), 20)
                pub['stores'].append(nst[0])
            del pend[:]
        st8['epi'] = False
        a.stamp('e%d' % nst[0], lvl=(1 if nst[0] in (1, 3, 5, NPUB) else 3))
    PL = 'buffer_load_dwordx4 v[4:7], v%d, %s, 0 offen sc1' % (VPA, sr(S_H))
    def rdy_test(u): return ['s_bfe_u32 s%d, s%d, 0x%x' % (S_T0, S_RDY + u//4, (8 << 16) | ((u % 4)*8)), 's_cmp_eq_u32 s%d, 0xff' % S_T0]
    def poll_issue(u=None):
        if u is None:
            a('s_mov_b64 %s, 0' % sr(S_RDY, 2)); a.vmem(PL, 'poll', P.LLAT); return
        for t in rdy_test(u): a(t)
        a('s_cselect_b32 s%d, 0x40000000, 0' % S_T1)
        a.vmem('buffer_load_dwordx4 v[4:7], v%d, %s, s%d offen sc1' % (VPA, sr(S_H), S_T1), 'poll', P.LLAT)
    def poll_eval():
        a('v_min_u32 v4, v4, v5'); a('v_min3_u32 v4, v4, v6, v7')
        a('v_cmp_gt_u32 vcc, v4, v%d' % VPT); a('s_nop 0'); a('s_or_b64 %s, %s, vcc' % (sr(S_RDY, 2), sr(S_RDY, 2)))
    def need_unit(u):
        lab = 'L_nu_%s_%d' % (name, u)
        tst = rdy_test(u)
        for t in tst: a(t)
        a('s_cbranch_scc0 %ss' % lab)
        a.label(lab)
        pend = pub['done'] < NPUB
        assert nst[0] == NPUB
        def emit():
            a.label(lab + 's')
            a('s_waitcnt lgkmcnt(0)')
            a('s_mov_b32 s%d, 0' % S_SPIN)
            if pend:
                a('s_waitcnt vmcnt(0) lgkmcnt(0)'); flag_atomic(NPUB if cls == 0 else 1, S_FV)
            a.label(lab + 'w')
            a('s_lshl_b64 exec, 0xff, %d' % (8*u)); a(PL); a('s_mov_b64 exec, -1'); a('s_waitcnt vmcnt(0) lgkmcnt(0)'); poll_eval()
            for t in tst: a(t)
            a('s_cbranch_scc1 %s' % lab)
            if P.SLEEP: a('s_sleep %d' % P.SLEEP)
            a('s_add_u32 s%d, s%d, 1' % (S_SPIN, S_SPIN)); a('s_cmp_gt_u32 s%d, 0x80000' % S_SPIN); a('s_cbranch_scc0 %sw' % lab)
            a('s_branch %s' % lab)
        slow.append(emit)
    def pfcode(nm):
        a('s_add_u32 s92, s18, L_code_%s-L_pc' % nm); a('s_addc_u32 s93, s19, 0')
        a('s_mov_b32 s94, L_codeend_%s-L_code_%s' % (nm, nm)); a('s_mov_b32 s95, 0x20000')
        a.vmem('buffer_load_dword v254, v%d, s[92:95], 0 offen' % VPR, 'pf', P.LLAT)
        if P.PF64: a.vmem('buffer_load_dword v254, v%d, s[92:95], 0 offen offset:64' % VPR, 'pf', P.LLAT)

    if code: a.label('L_cls%d' % code)
    if cls == 1:
        setup_ptrs(a)
        a('s_cmp_lg_u32 s%d, 0' % S_WAVE); a('s_cbranch_scc1 L_norst')
        a('s_bitcmp0_b32 s%d, 9' % T_K1); a('s_cbranch_scc1 L_norst')
        for i in range(4): a('v_mov_b32 v%d, 0' % (108+i))
        for i in range(5):
            a('s_mov_b32 s%d, %d' % (S_T0, FLAG0 + i*64*128))
            a('buffer_store_dwordx4 %s, v%d, %s, s%d offen sc1' % (vr(108), VPR, sr(S_H), S_T0))
        a.label('L_norst')
    if P.PFCODE == 2 and cls == 1:
        for c in [0] + list(range(3, 2 + len(VARS[P.SCHED]))): pfcode('c%d' % c)
    st8['limit'] = phases[0]['end']; dma_now(phases[0]['end'])
    if P.PFCODE == 1 or (P.PFCODE == 2 and cls == 1): pfcode(name)
    if P.PFCODE == 2 and cls == 1: pfcode('c2')
    a('s_barrier')
    st8['limit'] = phases[1]['end'] + 8
    dma_now(max(0, 12 - st8['pos']))
    if cls != 1: setup_ptrs(a)
    setup_late(a, cls)
    a.label('L_code_%s' % name)
    if P.TOUCH == 1:
        a('v_lshlrev_b32 v252, 20, v0')
        for srd in (S_WD, S_OUT, S_H): a.vmem('buffer_load_dword v254, v252, %s, 0 offen' % sr(srd), 'pf', P.LLAT)
    if P.TOUCH == 3:
        a('s_lshl_b32 s%d, s%d, 20' % (S_T0, S_WAVE)); a('s_lshl_b32 s%d, s%d, 21' % (S_T1, S_WAVE))
        a('s_buffer_load_dword s%d, %s, s%d' % (S_SPIN, sr(S_WD), S_T0))
        a('s_buffer_load_dword s%d, %s, s%d' % (S_SPIN, sr(S_OUT), S_T0))
        a('s_buffer_load_dword s%d, %s, s%d' % (S_SPIN, sr(S_H), S_T1))
        a('s_buffer_load_dword s%d, %s, s%d offset:0xffffc' % (S_SPIN, sr(S_H), S_T1))
        a('s_mov_b32 s%d, %d' % (S_T0, FLAG0 + 270*128 - 4))
        a('s_buffer_load_dword s%d, %s, s%d' % (S_SPIN, sr(S_H), S_T0))
        a('s_buffer_load_dword s%d, %s, 0xfc' % (S_SPIN, sr(S_DBG)))
    if P.TOUCH in (5, 7) and cls == 1: touch()
    if P.TOUCH == 2 and cls == 1:
        a('v_lshlrev_b32 v252, 20, v0')
        for srd in (S_WD, S_OUT, S_H): a.vmem('buffer_load_dword v254, v252, %s, 0 offen' % sr(srd), 'pf', P.LLAT)
    barrier(0)
    if cls == 1:
        a('s_cmp_lg_u32 s%d, 0' % S_WAVE); a('s_cbranch_scc1 L_nogo')
        a('s_bitcmp0_b32 s%d, 9' % T_K1); a('s_cbranch_scc1 L_nogo')
        a('s_waitcnt vmcnt(0)')
        a('s_mov_b32 s61, 1'); a('s_atomic_umax s61, s[%d:%d], 0' % (S_DBG, S_DBG+1))
        a.label('L_nogo')
    D = P.D
    nxt = 0; cur = 0
    polled = [False]
    for x in items:
        if 'epi' in x:
            while nxt < len(groups) and nxt < cur + D + 1: queue_reads(groups[nxt]); nxt += 1
            if cur == len(groups) and qph[0] < len(phases):
                qph[0] = len(phases); a.stamp('m'); barrier(len(phases))
                if cls == 0 and P.SHARE:
                    sig = repr(([x[0] for x in a.vm], a.lg, lds.free, sorted((k, v) for k, v in lds.addr.items() if k[0] == 'D'), dst, st8['bpos'], len(dq), a.nstamp))
                    if code == 0: TAIL['sig'] = sig; a.label('L_tail')
                    else:
                        assert sig == TAIL['sig'], (sig, TAIL['sig'])
                        a('s_branch L_tail')
                        for f in slow: f()
                        a.label('L_codeend_%s' % name)
                        if P.diag: a.raw(TAIL['names'].replace('cls 0', 'cls %d' % code))
                        return
            if x['epi'] == NPUB-1 and R: poll_issue(); polled[0] = True
            epilogue(x['epi'], x.get('nop')); continue
        g = x; cur = g['id'] + 1
        if cls == 0 and (len(groups) - g['id'])*64 < P.DSTOP: st8['stop'] = True
        while nxt < len(groups) and nxt <= g['id'] + D: queue_reads(groups[nxt]); nxt += 1
        if g['id'] == 0:
            while rq and rq[0][0] != 'bar' and len(a.lg) < 15: rq_pop()
        xb = XR + (g['id'] % RING)*8
        for i, (mat, ks) in enumerate(order(g)):
            need = [('x', g['id'], ks)]
            if g['newW']: need += [('W',) + g['w'] + (ks, mat, tt) for tt in range(2)]
            elif i == 0: need.append(('x', g['id'], 1))
            while any(n not in a.issued for n in need): rq_pop()
            a.wait(lg=need)
            c = '0' if (g['first'] and ks == 0) else vr(g['acc'] + mat*4)
            a.mfma(vr(g['acc'] + mat*4), vr(wreg(g, mat, ks), 4, 'a'), vr(xb + ks*4), c)
            gap()
    assert not rq
    flush_armed()
    a.raw('; D tiles left at P1 end: %d, next read group %d' % (len(bg) - st8['bpos'], dst['next']))
    st8['stop'] = False
    KS = P.KS if cls == 0 else 14
    parts = [(0, KS), (KS, 14)] if KS < 14 else [(0, 14)]
    ring = [('a', 72+4*i) for i in range(18)] + [('v', 52+4*i) for i in range(14)]
    seq = [(u, j) for j0, j1 in parts for u in range(nun) for j in range(j0, j1)]
    lidx = {x: n for n, x in enumerate(seq)}
    def hreg(u, j): p, b = ring[lidx[(u, j)] % len(ring)]; return vr(b, 4, p)
    chunks = []
    for pt, (j0, j1) in enumerate(parts):
        nc = -(-(j1-j0)//P.CHN)
        for u in range(nun):
            for c in range(nc): chunks.append((pt, u, j0 + (j1-j0)*c//nc, j0 + (j1-j0)*(c+1)//nc, c == nc-1))
    hq = []
    for n, (u, j) in enumerate(seq):
        if j in (0, KS):
            def ctl(u=u, j=j):
                if j == 0: a.wait(vm='poll'); poll_eval(); need_unit(u)
                a('s_mul_i32 s%d, s%d, %d' % (S_HL, T_U+u, 0 if P.FAKEH else 55296)); a('v_add_u32 v%d, s%d, v%d' % (VHT, S_HL, VHL))
                if j == 0: a.stamp('n%d' % u, lvl=(1 if u == 0 else 3))
                if j == 0 and u < nun-1 and KS < 14: poll_issue(u+1)
            hq.append((n, ctl))
        if KS == 14 and j == 14 - P.POLLB and u < nun-1: hq.append((n, lambda u=u: poll_issue(u+1)))
        hq.append((n, lambda u=u, j=j: a.vmem('buffer_load_dwordx4 %s, v%d, %s, s%d offen sc1' % (hreg(u, j), VHT, sr(S_H), S_JO+j), ('h', u, j), P.LLAT)))
        if n % P.DR == P.DR-1: hq.append((n, 'D'))
    def LA(): return P.LA0 if st8['bpos'] < len(bg) else P.LA
    lim = [4 + (P.LA0 if KS < 14 else P.LA)]
    def d_landed():
        j = dst['next']
        return j < 14 and ('D', j, 3) in fired and all(x[0] != ('D', j, 3) for x in a.vm)
    def h_pop():
        while hq and hq[0][0] < lim[0]:
            f = hq.pop(0)[1]
            if f == 'D':
                d_release()
                if can_arm(): dma_now(); return True
                continue
            f(); return True
        return False
    def d_step():
        while dq: dq.pop(0)()
        if st8['bpos'] >= len(bg): return False
        if can_arm(): dma_now(); return True
        d_try()
        if dq: return True
        if dst['rel']: a.wait(lg='all'); d_release(); return True
        d_try(True); assert dq
        return True
    while True:
        d_try()
        if not dq: break
        while dq: dq.pop(0)()
    if a.lg: a.wait(lg='all')
    d_release()
    for _ in range(P.POSTD):
        if can_arm(): dma_now()
    pub_try(True)
    assert pub['done'] == NPUB
    a.stamp('pub', lvl=1)
    tgt = len(bg) if KS == 14 else max(4*KS, min(len(bg), st8['bpos'] + P.NPRE))
    while st8['bpos'] < tgt:
        if not polled[0] and tgt - st8['bpos'] <= P.POLLB: poll_issue(); polled[0] = True
        d_step()
    if not polled[0]: poll_issue()
    a.stamp('dissued', lvl=2)
    def need_d(j1):
        while dst['next'] < j1 or dq:
            while ('D', min(dst['next'], 13), 3) not in fired: d_step()
            d_try(True)
            while dq: dq.pop(0)()
    while dst['next'] < chunks[0][3] or dq:
        d_try()
        if not dq:
            if h_pop(): continue
            d_try(True)
        while dq: dq.pop(0)()
    a.stamp('dread', lvl=2)
    RA = 2
    def red_setup():
        for d in range(1, 4): a('v_xor_b32 v%d, %d, v%d' % (DA+d, d*1024, VRD))
        for d in range(0, 4): a('v_add_u32 v%d, 65536, v%d' % (DA+4+d, DA+d if d else VRD))
        a('v_bfe_u32 v%d, v0, 4, 1' % (DA+8))
    def acc2(u, d): return vr(OWN + 4*u) if d == 0 else vr(12*u + (d-1)*4, 4, 'a')
    def red_write(u, d):
        off = (u*3 + d-1)*4096
        a.lds('ds_write_b128 v%d, %s offset:%d' % (DA + d + 4*(off//65536), acc2(u, d), off % 65536), ('rw', u))
    def red_items(u0, u1, q):
        us = [u0] + ([u1] if u1 is not None else [])
        it = []
        for n, u in enumerate(us):
            for d in range(1, 4):
                off = (u*3 + d-1)*4096
                it.append(lambda n=n, u=u, d=d, off=off: a.lds('ds_read_b128 %s, v%d offset:%d' % (vr(RT + 12*n + 4*(d-1)), VRD if off < 65536 else DA+4, off % 65536), ('rr', u)))
        S0, S1 = S_KW, S_DO
        it.append(lambda: a('s_mov_b32 s%d, s%d' % (S0, T_O0)) if u0 == 0 else a('s_mul_i32 s%d, s%d, 20480' % (S0, T_U+u0)))
        it.append(lambda: a('s_mul_i32 s%d, s%d, 20480' % (S1, T_U+u1)) if u1 is not None else a('s_mov_b32 s%d, 0x40000000' % S1))
        it.append(lambda: a('s_sub_u32 s%d, s%d, s%d' % (S1, S1, S0)))
        it.append(lambda: a('v_mul_lo_u32 v1, v%d, s%d' % (DA+8, S1)))
        it.append(lambda: a('v_add3_u32 v1, v1, v%d, s%d' % (VO, S0)))
        for n, u in enumerate(us):
            o = OWN + 4*u; r = RT + 12*n
            it.append(lambda u=u: a.wait(lg=('rr', u)))
            for i in range(4): it.append(lambda i=i, r=r: a('v_add_f32 v%d, v%d, v%d' % (r+i, r+i, r+4+i)))
            for i in range(4): it.append(lambda i=i, r=r, o=o: a('v_add_f32 v%d, v%d, v%d' % (o+i, o+i, r+8+i)))
            for i in range(4): it.append(lambda i=i, r=r, o=o: a('v_add_f32 v%d, v%d, v%d' % (o+i, o+i, r+i)))
            for p in range(2): it.append(lambda n=n, p=p, o=o: a('v_cvt_pk_bf16_f32 v%d, v%d, v%d' % (q + 2*n + p, o+2*p, o+2*p+1)))
        def fin():
            a('s_nop 1')
            a('v_permlane16_swap_b32 v%d, v%d' % (q, q+2))
            a('v_permlane16_swap_b32 v%d, v%d' % (q+1, q+3))
            a.vmem('buffer_store_dwordx4 %s, v1, %s, 0 offen%s' % (vr(q), sr(S_OUT), ['', ' sc1', ' nt', ' sc0 sc1'][P.OPOL]), 'o', 400)
        it.append(fin)
        return it
    wq = []; red = []; since = [99]; fin = []; setup = [False]
    for ci, (pt, u, j0, j1, endu) in enumerate(chunks):
        last = ci == len(chunks) - 1
        lim[0] = min(lidx[(u, j0)] + len(ring), lidx[(u, j1-1)] + 1 + LA())
        while h_pop(): pass
        if not last: lim[0] = min(lidx[(u, j0)] + len(ring), lidx[(chunks[ci+1][1], chunks[ci+1][3]-1)] + 1 + LA())
        need_d(j1)
        while ci == 0 and d_landed():
            d_try(True)
            while dq: dq.pop(0)()
        if wq and not setup[0]:
            need_d(14); a.wait(lg='all'); a('s_barrier'); red_setup(); setup[0] = True
        if len(fin) >= 2 and not wq and not red and fin[0] < 4 and not P.NORED:
            a.wait(lg='all'); a('s_barrier')
            red = red_items(fin[0], fin[1], OQ + fin[0]*2); del fin[:2]
        a.wait(vm=('h', u, j1-1), lg=[('dr', j) for j in range(j1)])
        n = 0
        for d in ((1, 2, 3, 0) if last else (0, 1, 2, 3)):
            for j in range(j0, j1):
                if not (P.NOMF and d): a.mfma(acc2(u, d), dreg(j, d*4, 4), hreg(u, j), '0' if j == 0 else acc2(u, d))
                n += 1; since[0] += 1
                if wq and since[0] >= 4 and n % 2 == 0: wq.pop(0)()
                elif n % P.HP == 1 and h_pop(): pass
                else:
                    if not dq and d_landed(): d_try(True); dq.pop(0)()
                    for _ in range(2):
                        if dq: dq.pop(0)()
                        elif red: red.pop(0)()
        if endu and pt == len(parts)-1:
            while wq: wq.pop(0)()
            wq = [lambda u=u, d=d: red_write(u, d) for d in range(1, 4)]; since[0] = 0; fin.append(u)
        if endu: a.stamp('u%d%d' % (pt, u), lvl=(1 if last or (u == 0 and pt == 0) or (u == nun-1) else 3))
    tail = list(fin)
    while red: red.pop(0)()
    wq.pop(0)(); a('s_nop 1'); wq.pop(0)(); a('s_nop 2'); wq.pop(0)()
    a.wait(lg='all'); a('s_barrier')
    a.raw('; tail units %s' % tail)
    while tail:
        for f in red_items(tail[0], tail[1] if len(tail) > 1 else None, OQ + (tail[0] % 4)*2): f()
        del tail[:2]
    a.stamp('end')
    if P.diag:
        a.wait(vm='all')
        a.stamp('end2', False, 0); a.stamp('end_rt', True, 0)
        a('s_getreg_b32 s98, hwreg(HW_REG_XCC_ID)'); a('v_writelane_b32 v255, s98, 63')
        a('v_writelane_b32 v255, s%d, 62' % T_CLS); a('v_writelane_b32 v255, s%d, 61' % T_K0)
        if P.PROBE >= 0:
            a('s_nop 1'); a('v_readlane_b32 s96, v255, %d' % (P.PROBE if cls == 0 else 0)); a('s_nop 3')
            a('s_add_u32 s96, s96, 4000')
            if P.PWG >= 0:
                a('s_cmp_lg_u32 s2, %d' % P.PWG); a('s_cbranch_scc1 L_end')
            a.label('L_probe_%s' % name)
            a('s_sleep 1'); a('s_memrealtime s[98:99]'); a('s_waitcnt lgkmcnt(0)')
            a('s_sub_u32 s97, s98, s96'); a('s_cmp_lt_i32 s97, 0'); a('s_cbranch_scc1 L_probe_%s' % name)
            a('s_endpgm')
        if P.DBGOUT:
            a('v_readlane_b32 s96, v255, 0'); a('v_readlane_b32 s97, v255, %d' % (a.nstamp-1)); a('s_nop 3')
            a('s_not_b32 s95, s96'); a('v_mov_b32 v2, s97'); a('v_mov_b32 v3, s95'); a('v_mov_b32 v1, 0')
            a('s_mov_b64 exec, 1')
            a('buffer_atomic_umax v2, v1, %s, 0 offen offset:4 sc1' % sr(S_DBG))
            a('buffer_atomic_umax v3, v1, %s, 0 offen offset:8 sc1' % sr(S_DBG))
            a('s_mov_b64 exec, -1')
            a('v_subrev_u32 v2, s96, v255'); a('v_lshlrev_b32 v3, 2, v0')
            a('s_lshl_b32 s95, s2, 2'); a('s_add_u32 s95, s95, s%d' % S_WAVE); a('s_cmp_eq_u32 s95, 404'); a('s_cselect_b32 s95, 4, 0x10000')
            a('s_mov_b64 exec, 0x7ffc')
            a('buffer_store_dword v2, v3, %s, s95 offen' % sr(S_DBG))
            a('s_mov_b64 exec, -1')
        a('s_mov_b32 s%d, 0x4000000' % (S_H+2))
        a('s_lshl_b32 s98, s2, 2'); a('s_add_u32 s98, s98, s%d' % S_WAVE); a('s_lshl_b32 s98, s98, 8')
        a('s_add_u32 s98, s98, %d' % (16 << 20))
        a('v_lshlrev_b32 v254, 2, v0')
        a('buffer_store_dword v255, v254, %s, s98 offen' % sr(S_H))
        a('s_waitcnt vmcnt(0)')
        a.raw('; nstamp %d cls %d' % (a.nstamp, code))
        if code == 0: TAIL['names'] = '; nstamp %d cls 0' % a.nstamp
        if P.diag == 2: a.raw('; realtime stamps')
    a('s_endpgm')
    for f in slow: f()
    a.label('L_codeend_%s' % name)

def jobs():
    nspec = [2, 2, 2, 1, 1, 2, 2, 1]
    tiles = [(s, g) for s in range(27) for g in range(9)]
    p1 = {x: [] for x in range(8)}; pos = 0
    for p in range(4):
        n0, n1 = 32 - nspec[2*p], 32 - nspec[2*p+1]
        mine = sorted(tiles[pos:pos+n0+n1], key=lambda t: (t[1], t[0])); pos += n0+n1
        p1[2*p] = [(0,) + t for t in mine[:n0]]; p1[2*p+1] = [(0,) + t for t in mine[n0:]]
    assert pos == 243
    st = 0
    for x in range(8):
        for i in range(nspec[x]):
            c = 2 if (x == 6 and i == 1) else 1
            p1[x].insert(0, (c, st, 9)); st += c+1
    assert st == 27
    p2 = {}; drot = {}; dupc = set()
    if P.ALIGN:
        for half in range(2):
            xs = [2*q + half for q in range(4)]
            s2 = [(x, i) for x in xs for i, j in enumerate(p1[x]) if j[0] == 1]
            assert len(s2) == 6
            extra6 = {3: s2[0], 4: s2[3]}; reg6 = {3: [s2[1], s2[4]], 4: [s2[2], s2[5]]}
            left = {si: list(range(120, 128)) for si in range(5)}
            spare = []
            for q, x in enumerate(xs):
                norm = sorted([i for i, j in enumerate(p1[x]) if j[0] != 1], key=lambda i: -p1[x][i][0])
                nsp = 2 - sum(1 for v in extra6.values() if v[0] == x)
                spare += [(x, norm.pop(0)) for _ in range(nsp)]
                for si in range(5):
                    mine = [c for c in reg6.get(si, []) if c[0] == x]
                    for r in range(6):
                        c = mine.pop() if mine else (x, norm.pop())
                        us = sorted(range(30*q, 30*q+30), key=lambda u: (abs((u//2) % 7 - 3), u))[r::6]
                        if p1[x][c[1]][0] == 1: us.append(left[si].pop())
                        p2[c] = (5*half + si, us); drot[c] = ((r + 3*si) % 7)*2
                assert not norm
            for si in (3, 4): p2[extra6[si]] = (5*half + si, left[si]); drot[extra6[si]] = ((6 + 3*si) % 7)*2; assert len(left[si]) == 6
            assert len(spare) == 6
            spare.sort(key=lambda c: c[0])
            for n_, c in enumerate(spare):
                si = n_ % 3; us = left[si][4*(n_//3):4*(n_//3)+4]
                p2[c] = (5*half + si, [us[0]] + us); dupc.add(c); drot[c] = ((6 + 3*si) % 7)*2
    else:
        nmat = [(7,6,7,6), (6,7,6,7), (7,6,6,7), (6,7,6,6), (6,6,7,6)]
        def pos_of(u):
            b = u//2
            return (b % 7) if b < 63 else 3.5
        for half in range(2):
            xs = [2*q + half for q in range(4)]
            avail = {x: sorted([i for i, j in enumerate(p1[x]) if j[0] != 1], key=lambda i, x=x: p1[x][i][0]) for x in xs}
            s2 = [(x, i) for x in xs for i, j in enumerate(p1[x]) if j[0] == 1]
            assert len(s2) == 6, s2
            six = {3: s2[0::2], 4: s2[1::2]}
            for si in range(5):
                ds = 5*half + si
                cus = []
                for q, x in enumerate(xs):
                    sp = [i for (xx, i) in six.get(si, []) if xx == x]
                    l = [(x, i, 6) for i in sp]
                    for _ in range(nmat[si][q] - len(sp)): l.append((x, avail[x].pop(), 5))
                    cus.append(l)
                extra = sum(c[2] for l in cus for c in l) - 128
                assert extra in (0, 2)
                u0 = 0
                for q, l in enumerate(cus):
                    n = sum(c[2] for c in l)
                    dup = 1 if (extra and nmat[si][q] == 7) else 0
                    us = list(range(u0, u0 + n - dup)); u0 += n - dup
                    us.sort(key=lambda u: (pos_of(u), u))
                    if dup: us.insert(0, us[0]); dupc.add((l[0][0], l[0][1]))
                    asg = {c: [] for c in l}
                    k = 0
                    for c in l:
                        if c[2] == 6: asg[c].append(us[k]); k += 1
                    for rd in range(5):
                        for c in l: asg[c].append(us[k]); k += 1
                    for n_, c in enumerate(l):
                        p2[(c[0], c[1])] = (ds, asg[c]); gd = min(P.GD, len(l)); drot[(c[0], c[1])] = ((n_ + si) % gd)*14//gd
                assert u0 == 128

    recs = []
    sch = SCH[P.SCHED]
    for wg in range(256):
        x, i = wg % 8, wg // 8
        c, s, g = p1[x][i]
        blk0 = g*7
        order = sch[(s + g) % len(sch)]
        v = VMAP[P.SCHED][(s + g) % len(sch)]
        if c == 0 and v: c = 2 + v
        assert sorted(order) == list(range(10))
        k0 = sum(order[i] << (4*i) for i in range(8)); k1 = order[8] | (order[9] << 4)
        if P.REV and c not in (1, 2): assert P.PUBS == 7 or (P.MID and all(int(c_) % 2 for c_ in str(P.PUBS))); k1 |= ((s // len(sch)) % 2) << 8
        if wg == 0: assert c == 1; k1 |= 1 << 9
        nn = 32 - nspec[x]
        l0 = 4*(i - nspec[x]) if c not in (1, 2) else 4*nn + 16*i
        k1 |= ((x % 2) << 10) | (l0 << 16)
        ds, us = p2[(x, i)]
        us = us + [us[-1]]*(6-len(us))
        recs.append((c, blk0*40960, s*128, k0, blk0*110592 + s*2048, (g*27 + s)*128, ds*128, drot[(x, i)]) + tuple(us) + (0x40000000 if (x, i) in dupc else us[0]*20480, k1))
    cover = [(r[6], u) for r in recs for u in r[(9 if r[14] == 0x40000000 else 8):8+(6 if r[0] == 1 else 5)]]
    assert len(cover) == 1280 and len(set(cover)) == 1280
    return recs

def build():
    a = Asm()
    hdr = open('standalone__glu_gated_geglu__prompt.s.ref').read().split('\n')[:8]
    for l in hdr: a.raw(l)
    a.raw('; @launch grid=(256,1,1) block=(256,1,1) lds=163840')
    a.raw('.amdgcn_target "amdgcn-amd-amdhsa--gfx950"'); a.raw('.text')
    a.raw('.globl %s\n.p2align 8\n.type %s,@function' % (KN, KN)); a.label(KN)
    setup_common(a)
    ns = a.nstamp
    for cls in [0] + list(range(3, 2 + len(VARS[P.SCHED]))) + [1, 2]:
        a.reset(); a.nstamp = ns
        gen_class(a, cls)
    a.label('L_end'); a('s_endpgm')
    a.raw('.p2align 6'); a.raw('.type jobtab,@object'); a.label('jobtab')
    for r in jobs(): a.raw('.long ' + ', '.join(str(int(x)) for x in r))
    a.raw('.size jobtab, %d' % (64*256))
    a.raw('''.section .rodata,"a"
.p2align 6
.amdhsa_kernel %s
  .amdhsa_next_free_vgpr 512
  .amdhsa_next_free_sgpr 102
  .amdhsa_accum_offset 256
  .amdhsa_group_segment_fixed_size 0
  .amdhsa_kernarg_size 56
  .amdhsa_user_sgpr_count 2
  .amdhsa_user_sgpr_kernarg_segment_ptr 1
  .amdhsa_system_sgpr_workgroup_id_x 1
  .amdhsa_float_denorm_mode_32 3
.end_amdhsa_kernel''' % KN)
    return '\n'.join(a.L) + '\n'

if __name__ == '__main__':
    out = sys.argv[1]
    for kv in sys.argv[2:]:
        k, v = kv.split('='); assert hasattr(P, k), k; setattr(P, k, int(v))
    txt = build()
    open(out, 'w').write(txt)
```
